```python
import torch

def _softmax(x, axis=-1):
    return torch.softmax(x, dim=axis)

def _gelu(x):
    return torch.nn.functional.gelu(x, approximate='tanh')

def _silu(x):
    return torch.nn.functional.silu(x)

def _sigmoid(x):
    return torch.sigmoid(x)

def _layernorm(x, axis=-1, eps=1e-05):
    m = x.mean(dim=axis, keepdim=True)
    v = x.var(dim=axis, keepdim=True, unbiased=False)
    return (x - m) / torch.sqrt(v + eps)

def _scatter_add(tgt, idx, src, axis=0):
    return tgt.clone().index_add_(axis, idx, src)

def _segment_sum(src, seg, n):
    out = torch.zeros((n,) + src.shape[1:], dtype=src.dtype)
    return out.index_add_(0, seg, src)

def _pad(x, pw):
    flat = tuple((v for pair in reversed(pw) for v in pair))
    return torch.nn.functional.pad(x, flat)
kernel_name = 'adaLN_cond__compressed_kv_cla__mixer_s_mlp__prompt'

def setup_inputs():

    _w = lambda a: (lambda t: t.to(torch.bfloat16) if t.is_floating_point() else t)(torch.as_tensor(a))

    def _A_setup():
        B, H, Sq, Sk, D, M = (1, 32, 2048, 2048, 128, 640)
        Dc = 4 * D
        return {'x': _w((lambda *s: torch.randn(*s, dtype=torch.bfloat16) * 0.05)(B, Sq, M)), 'c_kv': _w((lambda *s: torch.randn(*s, dtype=torch.bfloat16) * 1.6)(B, Sk, Dc)), 'w_q': _w((lambda *s: torch.randn(*s, dtype=torch.bfloat16) * 0.8)(M, H, D) * M ** (-0.5)), 'w_uk': _w((lambda *s: torch.randn(*s, dtype=torch.bfloat16) * 0.8)(Dc, H, D) * Dc ** (-0.5)), 'w_uv': _w((lambda *s: torch.randn(*s, dtype=torch.bfloat16) * 1.6)(Dc, H, D) * Dc ** (-0.5)), 'w_o': _w((lambda *s: torch.randn(*s, dtype=torch.bfloat16) * 1.6)(H, D, M) * (H * D) ** (-0.5))}
    _A_in = _A_setup()

    def _B_setup():
        B, S, D, F = (1, 2048, 640, 1728)
        return {'x': _w((lambda *s: torch.randn(*s, dtype=torch.bfloat16) * 0.05)(B, S, D)), 'w1': _w((lambda *s: torch.randn(*s, dtype=torch.bfloat16) * 3.2)(D, D) * D ** (-0.5)), 'w2': _w((lambda *s: torch.randn(*s, dtype=torch.bfloat16) * 3.2)(D, D) * D ** (-0.5)), 'w3': _w((lambda *s: torch.randn(*s, dtype=torch.bfloat16) * 3.2)(D, F) * D ** (-0.5)), 'w4': _w((lambda *s: torch.randn(*s, dtype=torch.bfloat16) * 3.2)(F, D) * F ** (-0.5))}
    _B_in = _B_setup()
    return {'A_x': _A_in['x'], 'A_c_kv': _A_in['c_kv'], 'A_w_q': _A_in['w_q'], 'A_w_uk': _A_in['w_uk'], 'A_w_uv': _A_in['w_uv'], 'A_w_o': _A_in['w_o'], 'B_x': _B_in['x'], 'B_w1': _B_in['w1'], 'B_w2': _B_in['w2'], 'B_w3': _B_in['w3'], 'B_w4': _B_in['w4'], 'c': _w((lambda *s: torch.randn(*s, dtype=torch.bfloat16) * 0.1)(1, 640) * 8.0), 'w_mod': _w((lambda *s: torch.randn(*s, dtype=torch.bfloat16) * 0.1)(640, 6 * 640) * 640 ** (-0.5) * 8.0)}

def reference(A_x, A_c_kv, A_w_q, A_w_uk, A_w_uv, A_w_o, B_x, B_w1, B_w2, B_w3, B_w4, c, w_mod):

    def _A_ref(x, c_kv, w_q, w_uk, w_uv, w_o):
        B, Sq, M = (x.shape[0], x.shape[1], x.shape[2])
        Sk = c_kv.shape[1]
        H, D = (w_q.shape[1], w_q.shape[2])
        q = torch.einsum('bqm,mhd->bhqd', x, w_q)
        k = torch.einsum('bkc,chd->bhkd', c_kv, w_uk)
        v = torch.einsum('bkc,chd->bhkd', c_kv, w_uv)
        scores = torch.einsum('bhqd,bhkd->bhqk', q, k) * D ** (-0.5)
        off = Sk - Sq
        qi = torch.arange(Sq)[:, None]
        kj = torch.arange(Sk)[None, :]
        cmask = kj <= qi + off
        scores = torch.where(cmask[None, None], scores, -1000000000.0)
        p = _softmax(scores, axis=-1)
        ctx = torch.einsum('bhqk,bhkd->bhqd', p, v)
        return torch.einsum('bhqd,hdm->bqm', ctx, w_o)

    def _B_ref(x, w1, w2, w3, w4):
        B, S, D = x.shape
        h = _gelu(_layernorm(x, axis=-1) @ w1)
        c = D // 4
        g0 = _pad(h[:, :, 0 * c:1 * c], ((0, 0), (1, 0), (0, 0)))[:, :S, :]
        g1 = _pad(h[:, :, 1 * c:2 * c], ((0, 0), (0, 1), (0, 0)))[:, 1:, :]
        g2 = _pad(h[:, :, 2 * c:3 * c], ((0, 0), (2, 0), (0, 0)))[:, :S, :]
        g3 = _pad(h[:, :, 3 * c:], ((0, 0), (0, 2), (0, 0)))[:, 2:, :]
        hs = torch.concatenate([g0, g1, g2, g3], axis=-1) @ w2
        x1 = x + hs
        h2 = _gelu(_layernorm(x1, axis=-1) @ w3) @ w4
        return x1 + h2
    x = A_x
    mod = (_silu(c) @ w_mod).reshape(c.shape[0], 6, 1, -1)
    sa, ca, ga, sb, cb, gb = (mod[:, 0].clone(), mod[:, 1].clone(), mod[:, 2].clone(), mod[:, 3].clone(), mod[:, 4].clone(), mod[:, 5].clone())
    h = _layernorm(x, axis=-1) * (1 + ca) + sa
    x = x + ga * _A_ref(h, A_c_kv, A_w_q, A_w_uk, A_w_uv, A_w_o)
    h = _layernorm(x, axis=-1) * (1 + cb) + sb
    x = x + gb * _B_ref(h, B_w1, B_w2, B_w3, B_w4)
    return x
```

```python
import re

def v(a, n=1):
    return f"v{a}" if n == 1 else f"v[{a}:{a+n-1}]"
def s(a, n=1):
    return f"s{a}" if n == 1 else f"s[{a}:{a+n-1}]"

class K:
    def __init__(self):
        self.L = []
    def __call__(self, txt):
        for line in txt.split("\n"):
            line = line.strip()
            if line:
                self.L.append(line)
        return self
    def label(self, name):
        self.L.append(name + ":")
    def ext(self, lst):
        for x in lst:
            self(x)
    def text(self):
        out = []
        for l in self.L:
            if l.endswith(":") or l.startswith("."):
                out.append(l)
            else:
                out.append("    " + l)
        return "\n".join(out) + "\n"

_reg = re.compile(r"^(-|\|)?(v|a|s)(\d+)$|^(-)?(v|a|s)\[(\d+):(\d+)\]$")
def parse_reg(tok):
    t = tok.strip()
    t = t.lstrip("-")
    if t.startswith("abs(") and t.endswith(")"):
        t = t[4:-1]
    t = t.strip("|")
    m = re.match(r"^(v|a|s)(\d+)$", t)
    if m:
        return [(m.group(1), int(m.group(2)))]
    m = re.match(r"^(v|a|s)\[(\d+):(\d+)\]$", t)
    if m:
        return [(m.group(1), i) for i in range(int(m.group(2)), int(m.group(3)) + 1)]
    if t == "vcc": return [("s", 106), ("s", 107)]
    if t == "vcc_lo": return [("s", 106)]
    if t == "vcc_hi": return [("s", 107)]
    if t == "exec": return [("s", 126), ("s", 127)]
    if t == "m0": return [("s", 124)]
    return []

TRANS = ("v_exp_f32", "v_log_f32", "v_rcp_f32", "v_rsq_f32", "v_sqrt_f32", "v_sin_f32", "v_cos_f32", "v_rcp_iflag_f32")

class Ins:
    __slots__ = ("txt", "op", "ops", "dst", "src", "kind", "passes", "srcC", "srcAB", "mods", "ws")
    def __init__(self, txt):
        self.txt = txt
        t = txt.split(";")[0].strip()
        parts = t.split(None, 1)
        self.op = parts[0]
        rest = parts[1] if len(parts) > 1 else ""
        ops = [o.strip() for o in re.split(r",(?![^\[\(]*[\]\)])", rest)] if rest else []
        self.mods = []
        if ops:
            lp = ops[-1].split()
            if len(lp) > 1 and not ops[-1].startswith(("vmcnt", "lgkmcnt", "expcnt", "hwreg")):
                ops[-1] = lp[0]; self.mods = lp[1:]
        self.ops = ops
        self.dst = []; self.src = []; self.kind = "other"; self.passes = 0; self.srcC = []; self.srcAB = []
        self.ws = 1
        op = self.op
        for suf in ("_e32", "_e64"):
            if op.endswith(suf): op = op[:-4]
        self.op = op
        R = [parse_reg(o) for o in ops]
        if op.startswith("v_mfma"):
            self.kind = "mfma"
            self.passes = 8 if "32x32x16" in op else 4 if "16x16x32" in op else 16
            self.dst = R[0]; self.srcAB = R[1] + R[2]; self.srcC = R[3]; self.src = self.srcAB + self.srcC
        elif op.startswith("v_"):
            self.kind = "trans" if op in TRANS else "valu"
            if op.startswith("v_cmp"):
                self.dst = R[0]; self.src = sum(R[1:], [])
                if op.startswith("v_cmpx"): self.dst = self.dst + [("s",126),("s",127)]
            elif op.startswith("v_permlane") and "swap" in op:
                self.dst = R[0] + R[1]; self.src = R[0] + R[1]
            elif op in ("v_add_co_u32", "v_sub_co_u32", "v_addc_co_u32", "v_subb_co_u32", "v_div_scale_f32", "v_mad_u64_u32"):
                self.dst = R[0] + R[1]; self.src = sum(R[2:], [])
            elif op in ("v_fmac_f32", "v_pk_fmac_f16", "v_dot2c_f32_bf16", "v_dot2c_f32_f16"):
                self.dst = R[0]; self.src = sum(R, [])
            elif op == "v_nop":
                pass
            else:
                self.dst = R[0]; self.src = sum(R[1:], [])
                if op == "v_cndmask_b32" and len(ops) == 3: self.src += [("s",106),("s",107)]
                if op == "v_writelane_b32": self.src += R[0]
        elif op.startswith("ds_"):
            self.kind = "ds"
            if op.startswith("ds_read") or op.startswith("ds_bpermute") or op.startswith("ds_permute") or op.startswith("ds_swizzle"):
                self.dst = R[0]; self.src = sum(R[1:], [])
            elif "_rtn" in op:
                self.dst = R[0]; self.src = sum(R[1:], [])
            else:
                self.src = sum(R, [])
        elif op.startswith("buffer_") or op.startswith("global_"):
            self.kind = "vmem"
            if op.startswith("buffer_load"):
                if "lds" in self.mods:
                    self.src = sum(R, []) + [("s",124)]
                else:
                    self.dst = R[0]; self.src = sum(R[1:], [])
            elif op.startswith("global_load_lds"):
                self.src = sum(R, []) + [("s",124)]
            elif op.startswith("global_load"):
                self.dst = R[0]; self.src = sum(R[1:], [])
            elif "atomic" in op and "sc0" in self.mods:
                self.dst = R[0]; self.src = sum(R, [])
            else:
                self.src = sum(R, [])
        elif op.startswith("s_load") or op in ("s_memtime", "s_memrealtime") or op.startswith("s_buffer_load"):
            self.kind = "smem"; self.dst = R[0]; self.src = sum(R[1:], [])
        elif op == "s_nop":
            self.kind = "nop"; self.ws = int(ops[0], 0) + 1
        elif op in ("s_waitcnt", "s_barrier", "s_endpgm", "s_branch", "s_setprio", "s_sleep") or op.startswith("s_cbranch"):
            self.kind = "ctl"
        elif op.startswith("s_cmp") or op.startswith("s_bitcmp"):
            self.kind = "salu"; self.src = sum(R, [])
        elif op.startswith("s_"):
            self.kind = "salu"; self.dst = R[0] if R else []; self.src = sum(R[1:], [])
            if "saveexec" in op: self.dst = self.dst + [("s",126),("s",127)]
            if op in ("s_addk_i32", "s_mulk_i32"): self.src += R[0]

def check_trace(lines, name="", verbose=True):
    errs = []
    ins = []
    for l in lines:
        t = l.split(";")[0].strip()
        if not t or t.endswith(":") or t.startswith("."):
            continue
        ins.append(Ins(t))
    pos = []
    p = 0
    for i in ins:
        pos.append(p); p += i.ws
    last_valu_w = {}
    last_trans_w = {}
    last_mfma_w = {}
    last_mfma_c = {}
    last_salu_m0 = None
    last_store = {}
    vm_q = []
    lg_q = []
    sm_out = []
    def dist(a, b):
        return pos[b] - pos[a] - ins[a].ws if ins[a].kind != "nop" else pos[b] - pos[a] - 1
    def need(a, b, n, why):
        d = pos[b] - (pos[a] + 1)
        if d < n:
            errs.append(f"[{name}] {why}: need {n} have {d}\n      P: {ins[a].txt}\n      C: {ins[b].txt}  (#{b})")
    for b, I in enumerate(ins):
        isvalu = I.kind in ("valu", "trans")
        if I.op == "s_waitcnt":
            txt = I.txt
            m = re.search(r"vmcnt\((\d+)\)", txt)
            if m:
                n = int(m.group(1))
                while len(vm_q) > n: vm_q.pop(0)
            m = re.search(r"lgkmcnt\((\d+)\)", txt)
            if m:
                n = int(m.group(1))
                if n == 0:
                    lg_q.clear(); sm_out.clear()
                else:
                    while len(lg_q) > n: lg_q.pop(0)
        touched = set(I.src) | set(I.dst)
        for (qi, regs) in vm_q:
            if regs & touched:
                errs.append(f"[{name}] vmcnt: reg of outstanding load touched\n      P: {ins[qi].txt}\n      C: {I.txt}  (#{b})")
        for (qi, regs) in lg_q + sm_out:
            if regs & touched and not (I.kind == "ds" and ins[qi].kind == "ds" and not (regs & set(I.src))):
                errs.append(f"[{name}] lgkmcnt: reg of outstanding op touched\n      P: {ins[qi].txt}\n      C: {I.txt}  (#{b})")
        if I.kind == "mfma":
            for r in I.src:
                if r in last_valu_w: need(last_valu_w[r], b, 2, "VALU->MFMA src")
            for r in I.srcAB:
                if r in last_mfma_w:
                    a = last_mfma_w[r]; need(a, b, {8: 12, 4: 8, 16: 20}[ins[a].passes], "MFMA D->MFMA A/B")
            for r in I.srcC:
                if r in last_mfma_w:
                    a = last_mfma_w[r]
                    if ins[a].dst == I.srcC and ins[a].passes == I.passes:
                        pass
                    else:
                        need(a, b, {8: 10, 4: 6, 16: 18}[ins[a].passes], "MFMA D->MFMA C overlap")
            for r in I.dst:
                if r in last_mfma_w and r not in I.srcC:
                    a = last_mfma_w[r]; need(a, b, {8: 10, 4: 6, 16: 18}[ins[a].passes], "MFMA D->MFMA D WAW")
            if ("s",126) in last_valu_w: need(last_valu_w[("s",126)], b, 4, "VALU exec->MFMA")
        if isvalu or I.kind in ("ds", "vmem"):
            regs = set(I.src) | set(I.dst)
            for r in regs:
                if r in last_mfma_w:
                    a = last_mfma_w[r]; need(a, b, {8: 12, 4: 8, 16: 20}[ins[a].passes], "MFMA D->VALU/mem")
        if isvalu or I.kind in ("ds", "vmem"):
            for r in I.dst:
                if r in last_mfma_c and isvalu:
                    a = last_mfma_c[r]; need(a, b, {8: 7, 4: 3, 16: 15}[ins[a].passes], "MFMA C read->VALU write")
        if isvalu:
            for r in I.src:
                if r in last_trans_w and I.kind != "trans": need(last_trans_w[r], b, 1, "trans->VALU")
                if r[0] == "s" and r in last_valu_w:
                    n = 2
                    if I.op in ("v_readlane_b32", "v_writelane_b32"): n = 4
                    need(last_valu_w[r], b, n, "VALU sgpr->VALU read")
                if r[0] == "v" and r in last_valu_w:
                    if I.op in ("v_readlane_b32", "v_readfirstlane_b32"): need(last_valu_w[r], b, 1, "VALU->readlane")
                    if I.op.startswith("v_permlane"): need(last_valu_w[r], b, 2, "VALU->permlane")
                    if any(m.startswith(("row_", "quad_perm", "wave_", "row_bcast")) for m in I.mods): need(last_valu_w[r], b, 2, "VALU->DPP")
            for r in I.dst:
                if r in last_store: need(last_store[r], b, 2, "store data WAR")
        if I.kind in ("ds", "vmem"):
            for r in I.src:
                if r in last_trans_w: need(last_trans_w[r], b, 1, "trans->mem")
            for r in I.dst:
                if r in last_store: need(last_store[r], b, 1, "store data WAR(load)")
        if I.kind == "vmem":
            for r in I.src:
                if r[0] == "s" and r in last_valu_w: need(last_valu_w[r], b, 5, "VALU sgpr->VMEM")
            if ("s",124) in I.src and last_salu_m0 is not None: need(last_salu_m0, b, 1, "M0->LDS DMA")
        for r in I.dst:
            last_valu_w.pop(r, None); last_trans_w.pop(r, None); last_mfma_w.pop(r, None)
        if isvalu:
            for r in I.dst:
                last_valu_w[r] = b
                if I.kind == "trans": last_trans_w[r] = b
        if I.kind == "mfma":
            for r in I.dst: last_mfma_w[r] = b
            for r in I.srcC: last_mfma_c[r] = b
        if I.kind == "salu" and ("s",124) in I.dst: last_salu_m0 = b
        if I.kind == "vmem":
            vm_q.append((b, set(I.dst)))
            if "store" in I.op and ("x4" in I.op or "x3" in I.op):
                data = parse_reg(I.ops[0]) if I.op.startswith("buffer") else parse_reg(I.ops[1])
                for r in data: last_store[r] = b
            if len(vm_q) > 63: errs.append(f"[{name}] vmcnt overflow at {I.txt} (#{b})")
        if I.kind == "ds":
            lg_q.append((b, set(I.dst)))
            if len(lg_q) > 15:
                pass
        if I.kind == "smem":
            sm_out.append((b, set(I.dst)))
    if verbose:
        seen = set()
        for e in errs:
            if e not in seen:
                if len(seen) < 12: print(e)
                seen.add(e)
    return errs
```

```python
from asmlib import *
from layout import *

KA = dict(x=0, ckv=8, wq=16, wuk=24, wuv=32, wo=40, bx=48, w1=56, w2=64, w3=72, w4=80, c=88, wmod=96, out=104, dbg=112, ws=120)
LOG2E = 1.4426950408889634

import struct
def f2u(x): return struct.unpack("<I", struct.pack("<f", x))[0]
def fhex(x): return f"0x{f2u(x):08x}"

def srd(k, d, p, nbytes, off=0):
    if off:
        k(f"s_add_u32 s{d}, s{p}, 0x{off:x}")
        k(f"s_addc_u32 s{d+1}, s{p+1}, 0")
    else:
        k(f"s_mov_b32 s{d}, s{p}")
        k(f"s_mov_b32 s{d+1}, s{p+1}")
    k(f"s_mov_b32 s{d+2}, 0x{nbytes:x}")
    k(f"s_mov_b32 s{d+3}, 0x00020000")

class VM:
    def __init__(self, k): self.k = k; self.q = []
    def issue(self, txt, tag):
        self.k(txt); self.q.append(tag)
    def note(self, tag): self.q.append(tag)
    def count_after(self, *tags):
        last = -1
        for i, t in enumerate(self.q):
            if t in tags: last = i
        return len(self.q) - 1 - last
    def wait(self, *tags):
        n = self.count_after(*tags)
        if n >= len(self.q): return
        self.k(f"s_waitcnt vmcnt({min(n,63)})")
        self.q = self.q[len(self.q)-n:] if n else []
    def waittxt(self, *tags):
        n = self.count_after(*tags)
        self.q = self.q[len(self.q)-n:] if n else []
        return f"s_waitcnt vmcnt({min(n,63)})"

def emit_segment(k, mf, nxt, ring, R, LA, fill=None, pre=None, waitpair=True, phase=0):
    fill = fill or {}; pre = pre or {}
    allreads = [m[1] for m in mf] + list(nxt)
    nops = [len(r(0)) for r in allreads]
    for n, (mfn, _) in enumerate(mf):
        for t in pre.get(n, []): k(t)
        if (not waitpair) or n % 2 == 0:
            last = n + 1 if (waitpair and n + 1 < len(mf)) else n
            cnt = sum(nops[last + 1: min(n + LA, len(allreads))])
            assert cnt <= 15
            k(f"s_waitcnt lgkmcnt({cnt})")
        k(mfn(ring + 4 * ((phase + n) % R)))
        if n + LA < len(allreads):
            for t in allreads[n + LA](ring + 4 * ((phase + n + LA) % R)): k(t)
        for t in fill.get(n, []):
            if callable(t): t()
            else: k(t)

def issue_first(k, reads, ring, R, LA, phase=0):
    for n in range(LA):
        for t in reads[n](ring + 4 * ((phase + n) % R)): k(t)

def mfma32(d, a, b, c):
    cs = "0" if c is None else v(c, 16)
    return f"v_mfma_f32_32x32x16_bf16 {v(d,16)}, {v(a,4)}, {v(b,4)}, {cs}"

def wave_sum(k, r, t):
    k("s_nop 1")
    k(f"v_add_f32_dpp v{r}, v{r}, v{r} quad_perm:[1,0,3,2] row_mask:0xf bank_mask:0xf")
    k("s_nop 1")
    k(f"v_add_f32_dpp v{r}, v{r}, v{r} quad_perm:[2,3,0,1] row_mask:0xf bank_mask:0xf")
    k("s_nop 1")
    k(f"v_add_f32_dpp v{r}, v{r}, v{r} row_half_mirror row_mask:0xf bank_mask:0xf")
    k("s_nop 1")
    k(f"v_add_f32_dpp v{r}, v{r}, v{r} row_mirror row_mask:0xf bank_mask:0xf")
    k(f"v_mov_b32 v{t}, v{r}")
    k("s_nop 1")
    k(f"v_permlane16_swap_b32 v{r}, v{t}")
    k(f"v_add_f32 v{r}, v{r}, v{t}")
    k(f"v_mov_b32 v{t}, v{r}")
    k("s_nop 1")
    k(f"v_permlane32_swap_b32 v{r}, v{t}")
    k(f"v_add_f32 v{r}, v{r}, v{t}")

def half_op(k, op, r, t):
    k(f"v_mov_b32 v{t}, v{r}")
    k("s_nop 1")
    k(f"v_permlane32_swap_b32 v{r}, v{t}")
    k(f"{op} v{r}, v{r}, v{t}")

def kernel_wrap(name, body, nv, ns=102):
    t = f".globl {name}\n.p2align 8\n.type {name},@function\n{name}:\n" + body
    return t
def kernel_desc(name, nv, ns=102):
    acc = min(256, (nv + 3) // 4 * 4)
    return f""".amdhsa_kernel {name}
  .amdhsa_next_free_vgpr {nv}
  .amdhsa_next_free_sgpr {ns}
  .amdhsa_accum_offset {acc}
  .amdhsa_group_segment_fixed_size 0
  .amdhsa_kernarg_size 128
  .amdhsa_user_sgpr_count 2
  .amdhsa_user_sgpr_kernarg_segment_ptr 1
  .amdhsa_system_sgpr_workgroup_id_x 1
  .amdhsa_float_denorm_mode_32 3
.end_amdhsa_kernel
"""

WSLOT = 34816
def wtile_lane_base(k, dst, t0):
    k(f"v_bfe_u32 v{dst}, v0, 2, 2")
    k(f"v_mul_u32_u24 v{dst}, 1088, v{dst}")
    k(f"v_bfe_u32 v{t0}, v0, 5, 1")
    k(f"v_lshl_add_u32 v{dst}, v{t0}, 8, v{dst}")
    k(f"v_bfe_u32 v{t0}, v0, 4, 1")
    k(f"v_lshl_add_u32 v{dst}, v{t0}, 5, v{dst}")
    k(f"v_and_b32 v{t0}, 3, v0")
    k(f"v_lshl_add_u32 v{dst}, v{t0}, 3, v{dst}")
def wtile_reads(va, ks, db):
    off = ks * 4352 + db * 64
    return lambda r: [f"ds_read_b64_tr_b16 {v(r,2)}, v{va} offset:{off}",
                      f"ds_read_b64_tr_b16 {v(r+2,2)}, v{va} offset:{off+512}"]
def wtile_dma_voff(k, dst, t0, pitch):
    k(f"v_bfe_u32 v{t0}, v0, 4, 2")
    k(f"v_mul_u32_u24 v{dst}, {4*pitch}, v{t0}")
    k(f"v_and_b32 v{t0}, 15, v0")
    k(f"v_lshl_add_u32 v{dst}, v{t0}, 4, v{dst}")

import os
STAMP = os.environ.get("STAMP", "")
WS_TS = 0x8000000
class Stamps:
    def __init__(self, k, name, sbase=64, maxn=16):
        self.k = k; self.on = name in STAMP.split(","); self.n = 0; self.sb = sbase; self.maxn = maxn
    def __call__(self):
        if not self.on: return
        assert self.n < self.maxn
        self.k(f"s_memtime {s(self.sb + 2*self.n, 2)}")
        self.n += 1
    def txt(self):
        if not self.on: return []
        self.n += 1
        return [f"s_memtime {s(self.sb + 2*(self.n-1), 2)}"]
    def flush(self, sws, swave, vt):
        if not self.on: return
        k = self.k
        k("s_waitcnt lgkmcnt(0)")
        k(f"s_lshl_b32 s62, s2, 4")
        k(f"s_add_u32 s62, s62, s{swave}")
        k(f"s_lshl_b32 s62, s62, 6")
        k(f"s_add_u32 s62, s62, {WS_TS}")
        k(f"v_mov_b32 v{vt+1}, 0")
        for i in range(self.n):
            k(f"v_mov_b32 v{vt}, s{self.sb + 2*i}")
            k(f"buffer_store_dword v{vt}, v{vt+1}, {s(sws,4)}, s62 offen offset:{4*i}")
```

```python
from common import *
NWG0 = 87 + 64
def gen_k0():
    k = K()
    k(f"s_cmp_ge_u32 s2, {NWG0}")
    k("s_cbranch_scc1 K0_end")
    k(f"s_load_dwordx2 s[4:5], s[0:1], {KA['ws']}")
    k(f"s_load_dwordx2 s[6:7], s[0:1], {KA['wmod']}")
    k(f"s_load_dwordx2 s[8:9], s[0:1], {KA['w3']}")
    k(f"s_load_dwordx2 s[10:11], s[0:1], {KA['c']}")
    k(f"s_load_dwordx2 s[12:13], s[0:1], {KA['ckv']}")
    k("s_waitcnt lgkmcnt(0)")
    srd(k, 16, 4, WS_SIZE)
    srd(k, 20, 10, 1280)
    srd(k, 24, 12, 2048*1024)
    k("s_cmp_ge_u32 s2, 87")
    k("s_cbranch_scc1 K0_conv")
    k("s_cmp_lt_u32 s2, 60")
    k("s_cselect_b32 s28, s6, s8")
    k("s_cselect_b32 s29, s7, s9")
    k("s_mov_b32 s32, 3456")
    k("s_cselect_b32 s32, 7680, s32")
    k("s_mul_i32 s30, s32, 640")
    k("s_mov_b32 s31, 0x00020000")
    k("s_cselect_b32 s33, 0, 60")
    k("s_sub_u32 s33, s2, s33")
    k("s_lshl_b32 s34, s33, 7")
    k("s_lshl_b32 s35, s32, 6")
    k("v_lshrrev_b32 v1, 3, v0")
    k("v_and_b32 v2, 7, v0")
    k("v_mul_lo_u32 v3, v1, s32")
    k("v_lshl_add_u32 v3, v2, 4, v3")
    k("v_lshlrev_b32 v4, 1, v1")
    for i in range(10):
        k(f"buffer_load_ushort v{10+i}, v4, s[20:23], 0 offen offset:{i*128}")
    for i in range(10):
        k(f"buffer_load_dwordx4 {v(32+4*i,4)}, v3, s[28:31], s34 offen")
        k("s_add_u32 s34, s34, s35")
    k("s_waitcnt vmcnt(10)")
    k(f"s_mov_b32 s36, {fhex(-LOG2E)}")
    for i in range(10):
        r = 10 + i
        k(f"v_lshlrev_b32 v{r}, 16, v{r}")
        k(f"v_mul_f32 v20, s36, v{r}")
        k(f"v_exp_f32 v20, v20")
        k("s_nop 0")
        k(f"v_add_f32 v20, 1.0, v20")
        k(f"v_rcp_f32 v20, v20")
        k("s_nop 0")
        k(f"v_mul_f32 v{r}, v{r}, v20")
        k(f"v_cvt_pk_bf16_f32 v{r}, v{r}, v{r}")
        k(f"v_lshlrev_b32 v{r}, 16, v{r}")
    k("s_cmp_lt_u32 s2, 60")
    k("s_cbranch_scc1 K0_g1")
    for i in range(10): k(f"v_mov_b32 v{10+i}, 1.0")
    k.label("K0_g1")
    for j in range(8): k(f"v_mov_b32 v{24+j}, 0")
    for i in range(10):
        k(f"s_waitcnt vmcnt({9-i})")
        for j in range(4):
            w = 32 + 4*i + j
            k(f"v_lshlrev_b32 v20, 16, v{w}")
            k(f"v_and_b32 v21, 0xffff0000, v{w}")
            k(f"v_fmac_f32 v{24+2*j}, v20, v{10+i}")
            k(f"v_fmac_f32 v{25+2*j}, v21, v{10+i}")
    k("v_lshlrev_b32 v5, 5, v0")
    k("ds_write_b128 v5, v[24:27]")
    k("ds_write_b128 v5, v[28:31] offset:16")
    k("s_waitcnt lgkmcnt(0)")
    k("s_barrier")
    k("v_and_b32 v6, 63, v0")
    k("v_lshrrev_b32 v7, 6, v0")
    k("v_lshlrev_b32 v5, 11, v7")
    k("v_lshl_add_u32 v5, v6, 2, v5")
    for i in range(8): k(f"ds_read_b32 v{32+i}, v5 offset:{i*256}")
    k("s_waitcnt lgkmcnt(0)")
    for i in range(1, 8): k(f"v_add_f32 v32, v32, v{32+i}")
    k("v_lshlrev_b32 v5, 2, v0")
    k("ds_write_b32 v5, v32 offset:16384")
    k("s_waitcnt lgkmcnt(0)")
    k("s_barrier")
    k("v_lshlrev_b32 v5, 2, v6")
    for i in range(8): k(f"ds_read_b32 v{32+i}, v5 offset:{16384+i*256}")
    k("s_waitcnt lgkmcnt(0)")
    for i in range(1, 8): k(f"v_add_f32 v32, v32, v{32+i}")
    k("s_lshl_b32 s34, s33, 8")
    k(f"s_add_u32 s34, s34, {WS_CS3}")
    k("s_cmp_ge_u32 s2, 60")
    k("s_cbranch_scc1 K0_st")
    k(f"s_sub_u32 s34, s34, {WS_CS3 - WS_MOD}")
    k("v_cvt_pk_bf16_f32 v32, v32, v32")
    k("v_lshlrev_b32 v32, 16, v32")
    k("s_sub_u32 s37, s2, 10")
    k("s_cmp_lt_u32 s37, 10")
    k("s_cselect_b32 s38, 1.0, 0")
    k("s_sub_u32 s37, s2, 40")
    k("s_cmp_lt_u32 s37, 10")
    k("s_cselect_b32 s38, 1.0, s38")
    k("v_add_f32 v32, s38, v32")
    k("v_cvt_pk_bf16_f32 v32, v32, v32")
    k("v_lshlrev_b32 v32, 16, v32")
    k.label("K0_st")
    k("v_cmp_gt_u32 vcc, 64, v0")
    k("s_and_saveexec_b64 s[40:41], vcc")
    k("s_cbranch_execz K0_end")
    k("buffer_store_dword v32, v5, s[16:19], s34 offen")
    k("s_branch K0_end")
    k.label("K0_conv")
    k("s_sub_u32 s33, s2, 87")
    k("v_and_b32 v1, 31, v0")
    k("v_bfe_u32 v2, v0, 5, 1")
    k("v_lshrrev_b32 v3, 6, v0")
    k("v_lshlrev_b32 v4, 10, v1")
    k("v_lshl_add_u32 v4, v2, 4, v4")
    k("v_lshl_add_u32 v4, v3, 7, v4")
    k("s_lshl_b32 s34, s33, 15")
    for i in range(4): k(f"buffer_load_dwordx4 {v(8+4*i,4)}, v4, s[24:27], s34 offen offset:{i*32}")
    k("v_and_b32 v5, 63, v0")
    k("v_lshlrev_b32 v5, 4, v5")
    k("v_lshl_add_u32 v5, v3, 12, v5")
    k(f"s_add_u32 s34, s34, {WS_CKV}")
    for i in range(4):
        r = 8 + 4*i
        k(f"s_waitcnt vmcnt({3})")
        k(f"v_permlane32_swap_b32 v{r}, v{r+2}")
        k(f"v_permlane32_swap_b32 v{r+1}, v{r+3}")
        k(f"buffer_store_dwordx4 {v(r,4)}, v5, s[16:19], s34 offen offset:{i*1024}")
    k.label("K0_end")
    k("s_endpgm")
    return k
```

```python
from common import *
def ln_row_code(k, vm, sX, sWS, srow, T):
    vo = T
    k(f"v_and_b32 v{T+1}, 63, v0")
    k(f"v_lshlrev_b32 v{vo}, 3, v{T+1}")
    k(f"v_cmp_gt_u32 s[44:45], 32, v{T+1}")
    k(f"v_mov_b32 v{T+2}, 0x7fff0000")
    k(f"v_add_u32 v{T+3}, 1024, v{vo}")
    k(f"v_cndmask_b32 v{T+3}, v{T+2}, v{T+3}, s[44:45]")
    k(f"s_mul_i32 s46, s{srow}, 1280")
    X = T + 4
    vm.issue(f"buffer_load_dwordx2 {v(X,2)}, v{vo}, {s(sX,4)}, s46 offen", "hx")
    vm.issue(f"buffer_load_dwordx2 {v(X+2,2)}, v{vo}, {s(sX,4)}, s46 offen offset:512", "hx")
    vm.issue(f"buffer_load_dwordx2 {v(X+4,2)}, v{T+3}, {s(sX,4)}, s46 offen", "hx")
    k(f"v_lshlrev_b32 v{T+2}, 4, v{T+1}")
    SA = T + 12; G = T + 24
    for p in range(3):
        vm.issue(f"buffer_load_dwordx4 {v(SA+4*p,4)}, v{T+2}, {s(sWS,4)}, 0 offen offset:{WS_MOD + p*1024}", "hx")
    k(f"s_mov_b32 s47, {WS_MOD + 2560}")
    for p in range(3):
        vm.issue(f"buffer_load_dwordx4 {v(G+4*p,4)}, v{T+2}, {s(sWS,4)}, s47 offen offset:{p*1024}", "hx")
    def compute():
        F = T + 36
        vm.wait("hx")
        for i in range(6):
            k(f"v_lshlrev_b32 v{F+2*i}, 16, v{X+i}")
            k(f"v_and_b32 v{F+2*i+1}, 0xffff0000, v{X+i}")
        S = T + 10; t = T + 11
        k(f"v_add_f32 v{S}, v{F}, v{F+1}")
        for i in range(2, 12): k(f"v_add_f32 v{S}, v{S}, v{F+i}")
        wave_sum(k, S, t)
        k(f"v_mul_f32 v{S}, {fhex(1/640)}, v{S}")
        for i in range(12): k(f"v_sub_f32 v{F+i}, v{F+i}, v{S}")
        for i in range(8, 12): k(f"v_cndmask_b32 v{F+i}, 0, v{F+i}, s[44:45]")
        k(f"v_mul_f32 v{S}, v{F}, v{F}")
        for i in range(1, 12): k(f"v_fmac_f32 v{S}, v{F+i}, v{F+i}")
        wave_sum(k, S, t)
        k(f"v_mov_b32 v{t}, {fhex(1e-5)}")
        k(f"v_fmac_f32 v{t}, {fhex(1/640)}, v{S}")
        k(f"v_rsq_f32 v{S}, v{t}")
        k("s_nop 0")
        for i in range(12): k(f"v_mul_f32 v{F+i}, v{F+i}, v{S}")
        for i in range(12): k(f"v_fma_f32 v{F+i}, v{F+i}, v{G+i}, v{SA+i}")
        for i in range(6): k(f"v_cvt_pk_bf16_f32 v{SA+i}, v{F+2*i}, v{F+2*i+1}")
        L = T + 1; D = T + 2; t2 = T + 3
        k(f"v_lshrrev_b32 v{D}, 2, v{L}")
        k(f"v_lshlrev_b32 v{D}, 10, v{D}")
        k(f"v_and_b32 v{t2}, 1, v{L}")
        k(f"v_lshl_add_u32 v{D}, v{t2}, 9, v{D}")
        k(f"v_bfe_u32 v{t2}, v{L}, 1, 1")
        k(f"v_lshl_add_u32 v{D}, v{t2}, 3, v{D}")
        k(f"v_add_u32 v{T}, 16384, v{D}")
        k(f"v_add_u32 v{t2}, 32768, v{D}")
        k(f"v_mov_b32 v{t}, 0x7fff0000")
        k(f"v_cndmask_b32 v{t2}, v{t}, v{t2}, s[44:45]")
        k(f"s_lshr_b32 s46, s{srow}, 5")
        k(f"s_mul_i32 s46, s46, 40960")
        k(f"s_and_b32 s47, s{srow}, 31")
        k(f"s_lshl_b32 s47, s47, 4")
        k(f"s_add_u32 s46, s46, s47")
        k(f"s_add_u32 s47, s46, {WS_XF}")
        k(f"s_add_u32 s46, s46, {WS_H}")
        for p, a in enumerate((D, T, t2)):
            vm.issue(f"buffer_store_dwordx2 {v(SA+2*p,2)}, v{a}, {s(sWS,4)}, s46 offen", "hst")
            vm.issue(f"buffer_store_dwordx2 {v(X+2*p,2)}, v{a}, {s(sWS,4)}, s47 offen", "hst")
    return compute

def gen_k1():
    k = K(); vm = VM(k); st = Stamps(k, 'k1')
    ACC = 16; RING = 80; ACT = 112
    vLB = 1; vWA = 2; vDO = 3; vL16 = 4
    k("s_cmp_ge_u32 s2, 256")
    k("s_cbranch_scc1 K1_end")
    st()
    k(f"s_load_dwordx2 s[4:5], s[0:1], {KA['ws']}")
    k(f"s_load_dwordx4 s[8:11], s[0:1], {KA['wuk']}")
    k(f"s_load_dwordx2 s[6:7], s[0:1], {KA['x']}")
    k("v_lshrrev_b32 v5, 6, v0")
    wtile_lane_base(k, vLB, 6)
    k("v_readfirstlane_b32 s3, v5")
    wtile_dma_voff(k, vDO, 6, 8192)
    k("v_and_b32 v4, 63, v0")
    k("v_lshlrev_b32 v4, 4, v4")
    k("s_and_b32 s32, s2, 7")
    k("s_lshr_b32 s33, s2, 3")
    k("s_and_b32 s34, s33, 7")
    k("s_lshr_b32 s35, s33, 3")
    k("s_lshl_b32 s32, s32, 2")
    k("s_add_u32 s35, s35, s32")
    k("s_lshl_b32 s36, s34, 3")
    k("s_add_u32 s36, s36, s3")
    k("s_lshl_b32 s37, s2, 3")
    k("s_add_u32 s37, s37, s3")
    k("s_waitcnt lgkmcnt(0)")
    srd(k, 16, 4, WS_SIZE)
    srd(k, 20, 8, 512*8192)
    srd(k, 24, 10, 512*8192)
    srd(k, 28, 6, 2048*1280)
    k("s_lshl_b32 s38, s35, 8")
    k("s_lshl_b32 s39, s3, 17")
    k("s_add_u32 s38, s38, s39")
    k("s_mul_i32 s39, s3, 4352")
    k(f"s_lshl_b32 s40, s36, 15")
    k(f"s_add_u32 s40, s40, {WS_CKV}")
    def dma(t):
        out = []
        sr = 20 if t < 4 else 24
        for e in range(4):
            def f(e=e):
                k(f"s_add_u32 m0, s39, {(t % 4) * WSLOT + e * 1088}")
                k(f"s_add_u32 s41, s38, {((t % 4) * 128 + e) * 8192}")
                vm.issue(f"buffer_load_dwordx4 v{vDO}, {s(sr,4)}, s41 offen lds", f"D{t}")
            out.append(f)
        return out
    def acts(g):
        for h in range(2):
            k(f"s_add_u32 s41, s40, {g*8192 + h*4096}")
            for i in range(4):
                vm.issue(f"buffer_load_dwordx4 {v(ACT + 32*g + 16*h + 4*i, 4)}, v{vL16}, s[16:19], s41 offen offset:{i*1024}", f"A{g}")
    def actf(g):
        out = []
        for h in range(2):
            for i in range(4):
                def f(h=h, i=i):
                    if i == 0: k(f"s_add_u32 s48, s40, {g*8192 + h*4096}")
                    vm.issue(f"buffer_load_dwordx4 {v(ACT + 32*g + 16*h + 4*i, 4)}, v{vL16}, s[16:19], s48 offen offset:{i*1024}", f"A{g}")
                out.append(f)
        return out
    for f in dma(0): f()
    for f in actf(0): f()
    hcomp = ln_row_code(k, vm, 28, 16, 37, ACC)
    for f in dma(1): f()
    st()
    hcomp()
    st()
    k(f"v_mov_b32 v{vWA}, v{vLB}")
    vm.wait("D1", "A0")
    k("s_barrier")
    st()
    R, LA = 8, 7
    order = [(ks, db) for db in range(4) for ks in range(8)]
    rd = [wtile_reads(vWA, ks, db) for (ks, db) in order]
    issue_first(k, rd, RING, R, LA)
    k("s_lshl_b32 s42, s35, 19")
    k("s_lshl_b32 s43, s36, 13")
    k("s_add_u32 s42, s42, s43")
    def epi(db, isV):
        d = ACC + 16 * db
        out = []
        for h in range(2):
            for i in range(4):
                out.append(f"v_cvt_pk_bf16_f32 v{d+8*h+i}, v{d+8*h+2*i}, v{d+8*h+2*i+1}")
            f = (h * 4 + db) if isV else (db * 2 + h)
            def g(f=f, h=h):
                k(f"s_add_u32 s43, s42, {(WS_V if isV else WS_K) + (f >> 2) * 4096}")
                vm.issue(f"buffer_store_dwordx4 {v(d+8*h,4)}, v{vL16}, s[16:19], s43 offen offset:{(f & 3) * 1024}", "st")
            out.append(g)
        return out
    def place(fill, items, g0, per):
        for i, it in enumerate(items): fill.setdefault(g0 + i // per, []).append(it)
    for t in range(8):
        isV = t >= 4
        mf = []
        for n, (ks, db) in enumerate(order):
            a = ACT + 4 * ((t % 4) * 8 + ks)
            d = ACC + 16 * db
            c = None if (t % 4 == 0 and ks == 0) else d
            if isV: fn = (lambda r, d=d, a=a, c=c: mfma32(d, a, r, c))
            else:   fn = (lambda r, d=d, a=a, c=c: mfma32(d, r, a, c))
            mf.append((fn, rd[n]))
        fill = {}
        loads = []
        if t < 3: loads += actf(t + 1)
        if t == 0: loads += dma(2)
        if t + 3 < 8: loads += dma(t + 3)
        step = 2 if len(loads) > 8 else 3
        if len(loads) > 12: step = 1
        for e, f in enumerate(loads): fill.setdefault(1 + step * e, []).append(f)
        if t % 4 == 3:
            for db in range(3): place(fill, epi(db, isV), 8 * (db + 1) + 3, 2)
        if t == 4: place(fill, epi(3, False), 3, 2)
        if t < 7:
            fill.setdefault(32 - LA - 1, []).append(f"v_add_u32 v{vWA}, {((t + 1) % 4) * WSLOT}, v{vLB}")
        emit_segment(k, mf, rd[:LA] if t < 7 else [], RING, R, LA, fill)
        if t < 7:
            tags = [f"D{t+2}"] if t + 2 < 8 else []
            if t < 3: tags.append(f"A{t+1}")
            if tags: vm.wait(*tags)
            k("s_barrier")
        st()
    k("s_nop 7"); k("s_nop 3")
    for it in epi(3, True):
        if callable(it): it()
        else: k(it)
    st()
    if st.on: k("s_waitcnt vmcnt(0)")
    st()
    st.flush(16, 3, 8)
    k.label("K1_end")
    k("s_endpgm")
    return k, 256, 512, 4 * WSLOT, 240
```

```python
from common import *
O = 16; RING = 80; H = 112
Q = 144; S0 = 176; S1 = 192; NEGM = 208; P0 = 224; P1 = 232; E = 112
vLB = 1; vWA = 2; vDO = 3; vL16 = 4; vL = 5; vLBk = 6; vT = 7; vT2 = 8; vNEG = 9; vD = 10; vF = 11
SM = 48
sHEAD, sPAIR, sRB, sREM, sTAU, sTMAX = 32, 33, 34, 35, 36, 37
sWSRC, sWLDS, sHB, sT0, sT1 = 38, 39, 40, 41, 42
sPREV, sCUR, sNEXT = 43, 44, 45
sKS, sVS = 46, 47
sKLIM, sVLIM, sOOB, sTHR, sSW = 80, 81, 82, 83, 84
R, LA = 8, 7
QSCALE = LOG2E * 128 ** -0.5
THR = 4096.0

def kv_read(off):
    return lambda r: [f"ds_read_b128 {v(r,4)}, v{vWA} offset:{off}"]
Kf = lambda blk: [kv_read(blk * 8192 + i * 1024) for i in range(8)]
Vf = lambda blk: [kv_read(16384 + blk * 8192 + i * 1024) for i in range(8)]

def pv_mf(blk, P):
    out = []
    rd = Vf(blk)
    for n in range(8):
        ks, db = n >> 2, n & 3
        out.append((lambda r, d=O + 16*db, b=P + 4*ks: mfma32(d, r, b, d), rd[n]))
    return out
def qk_mf(blk, S):
    out = []
    rd = Kf(blk)
    for n in range(8):
        out.append((lambda r, n=n: mfma32(S, r, Q + 4*n, NEGM if n == 0 else S), rd[n]))
    return out

def softmax_ops(S, P):
    ex = [f"v_exp_f32 v{E+i}, v{S+i}" for i in range(16)]
    ad = [None, f"v_add_f32 v{vLBk}, v{E}, v{E+1}"] + [f"v_add_f32 v{vLBk}, v{vLBk}, v{E+i}" for i in range(2, 16)]
    cv = [f"v_cvt_pk_bf16_f32 v{P+j}, v{E+2*j}, v{E+2*j+1}" for j in range(8)]
    return ex, ad, cv

def sched_softmax(S, P, g0, ngaps, budget):
    ex, ad, cv = softmax_ops(S, P)
    fill = {}
    ie = 0; ia = 1; ic = 0
    for g in range(g0, ngaps):
        b = budget(g); lst = []
        done_e = ie
        last = g == ngaps - 1
        while True:
            prog = False
            if ie < 16 and (b >= 8 or last):
                lst.append(ex[ie]); ie += 1; b -= 8; prog = True
                done_e = ie - 1
            if ia < 16 and ia < done_e and (b >= 4 or last):
                lst.append(ad[ia]); ia += 1; b -= 4; prog = True
            if ic < 8 and 2*ic + 1 < done_e and (b >= 4 or last):
                lst.append(cv[ic]); ic += 1; b -= 4; prog = True
            if not prog:
                if ie == 16 and done_e < 16 and (ia < 16 or ic < 8) and (b >= 4 or last):
                    if lst and lst[-1].startswith("v_exp"): lst.append("s_nop 0")
                    done_e = 16
                    continue
                break
        fill[g] = lst
    assert ie == 16 and ia == 16 and ic == 8, (ie, ia, ic)
    return fill

def merge(fill, other):
    for g, l in other.items(): fill.setdefault(g, []).extend(l)

def gen_path(k, isS, st, traces):
    pf = "S" if isS else "L"
    vm = VM(k)
    t_start = len(k.L)
    def wdma(t):
        out = []
        for e in range(4):
            def f(e=e):
                k(f"s_add_u32 m0, s{sWLDS}, {(t % 4) * WSLOT + e * 1088}")
                k(f"s_add_u32 s{sT0}, s{sWSRC}, {(t * 128 + e) * 8192}")
                vm.issue(f"buffer_load_dwordx4 v{vDO}, s[20:23], s{sT0} offen lds", f"D{t}")
            out.append(f)
        return out
    def kvdma_q(sig):
        tau = sig - 5
        if isS and tau == 0: return []
        out = []
        for e in range(4):
            def f(e=e):
                if e == 0:
                    k(f"s_add_u32 m0, s{sSW}, {(sig % 4) * WSLOT + (16384 if isS else 0)}")
                    k(f"s_add_u32 s{sT0}, s{sVS if isS else sKS}, {(tau - 3) * 16384 & 0xffffffff}")
                vm.issue(f"buffer_load_dwordx4 v{vL16}, s[24:27], s{sT0} offen offset:{e*1024} lds", f"D{sig}")
            out.append(f)
        return out
    def hload(g):
        out = []
        base = H + 32 * (g % 4)
        for h in range(2):
            for i in range(4):
                def f(h=h, i=i):
                    if i == 0: k(f"s_add_u32 s{sT1}, s{sHB}, {g*8192 + h*4096}")
                    vm.issue(f"buffer_load_dwordx4 {v(base + 16*h + 4*i, 4)}, v{vL16}, s[16:19], s{sT1} offen offset:{i*1024}", f"H{g}")
                out.append(f)
        return out
    def kvdma_main():
        out = []
        a = [f"s_add_u32 m0, s{sPREV}, s{sSW}",
             f"s_cmp_lt_u32 s{sKS}, s{sKLIM}",
             f"s_cselect_b32 s{sT0}, s{sKS}, s{sOOB}",
             f"s_add_u32 s{sKS}, s{sKS}, 16384"]
        for e in range(4):
            out.append((a if e == 0 else []) + [f"buffer_load_dwordx4 v{vL16}, s[24:27], s{sT0} offen offset:{e*1024} lds"])
        a = [f"s_add_u32 m0, m0, 16384",
             f"s_cmp_lt_u32 s{sVS}, s{sVLIM}",
             f"s_cselect_b32 s{sT0}, s{sVS}, s{sOOB}",
             f"s_add_u32 s{sVS}, s{sVS}, 16384"]
        for e in range(4):
            out.append((a if e == 0 else []) + [f"buffer_load_dwordx4 v{vL16}, s[24:27], s{sT0} offen offset:{e*1024} lds"])
        return out
    def run(lst):
        for it in lst:
            if callable(it): it()
            else: k(it)
    def rotate():
        return [f"s_mov_b32 s{sPREV}, s{sCUR}", f"s_mov_b32 s{sCUR}, s{sNEXT}",
                f"s_add_u32 s{sNEXT}, s{sNEXT}, {WSLOT}", f"s_cmp_eq_u32 s{sNEXT}, {4*WSLOT}",
                f"s_cselect_b32 s{sNEXT}, 0, s{sNEXT}", f"s_add_u32 s{sTAU}, s{sTAU}, 1"]
    def mask_ops():
        return [f"v_cndmask_b32 v{NEGM+r}, v{NEGM+r}, v{vNEG}, {s(SM+2*r,2)}" for r in range(16)]

    run(wdma(0)); run(hload(0)); run(wdma(1))
    k(f"v_and_b32 v{vT}, 31, v0")
    k(f"v_bfe_u32 v{vT2}, v0, 5, 1")
    k(f"v_lshlrev_b32 v{vT2}, 2, v{vT2}")
    k(f"v_sub_u32 v{vT}, v{vT}, v{vT2}")
    for r in range(16):
        k(f"v_cmp_gt_i32 {s(SM+2*r,2)}, {(r & 3) + 8 * (r >> 2)}, v{vT}")
    k(f"v_mov_b32 v{vNEG}, {fhex(-3.0e38)}")
    k(f"v_mov_b32 v{vWA}, v{vLB}")
    st()
    vm.wait("D1", "H0")
    k("s_barrier")
    st()
    order = [(ks, db) for db in range(4) for ks in range(8)]
    rd = [wtile_reads(vWA, ks, db) for (ks, db) in order]
    issue_first(k, rd, RING, R, LA)
    def qconv(db):
        d = O + 16 * db
        out = [f"v_mul_f32 v{d+i}, {fhex(QSCALE)}, v{d+i}" for i in range(16)]
        out += [f"v_cvt_pk_bf16_f32 v{Q+8*db+i}, v{d+2*i}, v{d+2*i+1}" for i in range(8)]
        out += [f"v_mov_b32 v{d+i}, 0" for i in range(16)]
        return out
    for t in range(5):
        mf = []
        for n, (ks, db) in enumerate(order):
            a = H + 32 * (t % 4) + 4 * ks
            d = O + 16 * db
            c = None if (t == 0 and ks == 0) else d
            mf.append((lambda r, d=d, a=a, c=c: mfma32(d, r, a, c), rd[n]))
        loads = []
        if t < 4: loads += hload(t + 1)
        if t == 0: loads += wdma(2)
        loads += wdma(t + 3) if t + 3 < 5 else kvdma_q(t + 3)
        fill = {}
        step = 2 if len(loads) <= 14 else 1
        for e, f in enumerate(loads): fill.setdefault(1 + step * e, []).append(f)
        if t == 4:
            for db in range(3):
                for i, it in enumerate(qconv(db)): fill.setdefault(8 * (db + 1) + 3 + i // 8, []).append(it)
            for r in range(16): fill.setdefault(r // 2, []).append(f"v_mov_b32 v{NEGM+r}, 0")
            fill.setdefault(32 - LA - 1, []).insert(0, f"v_add_u32 v{vWA}, {(5 % 4) * WSLOT}, v{vL16}")
            nxt = Kf(0)[:LA]
        else:
            fill.setdefault(32 - LA - 1, []).insert(0, f"v_add_u32 v{vWA}, {((t + 1) % 4) * WSLOT}, v{vLB}")
            nxt = rd[:LA]
        emit_segment(k, mf, nxt, RING, R, LA, fill)
        tags = [f"D{t+2}"] + ([f"H{t+1}"] if t < 4 else [])
        vm.wait(*tags)
        k("s_barrier")
        st()
    k(f"s_cmp_lg_u32 s{sREM}, 1")
    k(f"s_cbranch_scc1 {pf}_nm0")
    run(mask_ops())
    k.label(f"{pf}_nm0")
    k("s_nop 3")
    run(qconv(3))
    fill = {}
    if isS:
        for e, l in enumerate(kvdma_main()):
            fill[e] = list(l); vm.note("Dm")
    emit_segment(k, qk_mf(0, S0), Kf(1)[:LA], RING, R, LA, fill)
    k("s_nop 7"); k("s_nop 3")
    k(f"v_max3_f32 v{vD}, v{S0}, v{S0+1}, v{S0+2}")
    for i in range(3, 15, 2): k(f"v_max3_f32 v{vD}, v{vD}, v{S0+i}, v{S0+i+1}")
    k(f"v_max_f32 v{vD}, v{vD}, v{S0+15}")
    half_op(k, "v_max_f32", vD, vT)
    for r in range(16): k(f"v_sub_f32 v{NEGM+r}, 0, v{vD}")
    k(f"s_cmp_lg_u32 s{sREM}, 2")
    k(f"s_cbranch_scc1 {pf}_nm1")
    run(mask_ops())
    k.label(f"{pf}_nm1")
    for r in range(16): k(f"v_sub_f32 v{S0+r}, v{S0+r}, v{vD}")
    fill = sched_softmax(S0, P0, 0, 8, lambda g: 32)
    fill.setdefault(0, []).insert(0, f"v_add_u32 v{vWA}, s{sNEXT}, v{vL16}")
    emit_segment(k, qk_mf(1, S1), Vf(0)[:LA], RING, R, LA, fill)
    k(f"v_mov_b32 v{vL}, v{vLBk}")
    k(f"s_sub_u32 s{sREM}, s{sREM}, 1")
    run(rotate())
    vm.wait("D7")
    k("s_barrier")
    st()
    t_pro = k.L[t_start:]
    def step(par):
        nm = "AB"[par]
        Pin, Sc, Pout, Sn = (P0, S1, P1, S0) if par == 0 else (P1, S0, P0, S1)
        b0 = len(k.L)
        k(f"s_cmp_le_u32 s{sREM}, 2")
        k(f"s_cbranch_scc1 {pf}_rare{nm}")
        k.label(f"{pf}_go{nm}")
        def budget(g):
            b = 24 - 4 - (4 if g % 2 == 1 else 0)
            if g == 15: b -= 12
            return b
        fill = sched_softmax(Sc, Pout, 1, 16, budget)
        fill.setdefault(0, []).append(f"s_sub_u32 s{sREM}, s{sREM}, 1")
        if par == 0 and isS:
            for e, l in enumerate(kvdma_main()): fill.setdefault(2 * e, []).extend(l)
        if par == 1:
            fill.setdefault(16 - LA - 1, []).insert(0, f"v_add_u32 v{vWA}, s{sNEXT}, v{vL16}")
            for i, it in enumerate(rotate()): fill.setdefault(9 + i, []).insert(0, it)
        fill[15] += [f"v_cmp_lt_f32 vcc, s{sTHR}, v{vLBk}"]
        emit_segment(k, pv_mf(par, Pin) + qk_mf(par, Sn), Vf(1 - par)[:LA], RING, R, LA, fill)
        k(f"s_cbranch_vccnz {pf}_slow{nm}")
        k.label(f"{pf}_back{nm}")
        k(f"v_add_f32 v{vL}, v{vL}, v{vLBk}")
        return k.L[b0:]
    k(".p2align 6")
    k.label(f"{pf}_loop")
    tA = step(0)
    tB = step(1)
    b0 = len(k.L)
    if isS: k("s_waitcnt vmcnt(8)")
    k("s_barrier")
    k(f"s_branch {pf}_loop")
    tE = k.L[b0:]
    tr_rare = {}
    for par in range(2):
        nm = "AB"[par]
        k.label(f"{pf}_rare{nm}")
        b0 = len(k.L)
        k(f"s_cmp_eq_u32 s{sREM}, 0")
        k(f"s_cbranch_scc1 {pf}_fin{nm}")
        k(f"s_cmp_eq_u32 s{sREM}, 1")
        k(f"s_cbranch_scc1 {pf}_go{nm}")
        run(mask_ops())
        k(f"s_branch {pf}_go{nm}")
        tr_rare[par] = k.L[b0:]
    tr_slow = {}
    for par in range(2):
        nm = "AB"[par]
        Pin, Sc, Pout, Sn = (P0, S1, P1, S0) if par == 0 else (P1, S0, P0, S1)
        k.label(f"{pf}_slow{nm}")
        b0 = len(k.L)
        k(f"v_max3_f32 v{vD}, v{Sc}, v{Sc+1}, v{Sc+2}")
        for i in range(3, 15, 2): k(f"v_max3_f32 v{vD}, v{vD}, v{Sc+i}, v{Sc+i+1}")
        k(f"v_max3_f32 v{vD}, v{vD}, v{Sc+15}, 0")
        half_op(k, "v_max_f32", vD, vT)
        k(f"v_sub_f32 v{vF}, 0, v{vD}")
        k(f"v_exp_f32 v{vF}, v{vF}")
        for r in range(16): k(f"v_sub_f32 v{Sc+r}, v{Sc+r}, v{vD}")
        for r in range(64): k(f"v_mul_f32 v{O+r}, v{O+r}, v{vF}")
        k(f"v_mul_f32 v{vL}, v{vL}, v{vF}")
        for r in range(16): k(f"v_sub_f32 v{NEGM+r}, v{NEGM+r}, v{vD}")
        for r in range(16): k(f"v_sub_f32 v{Sn+r}, v{Sn+r}, v{vD}")
        ex, ad, cv = softmax_ops(Sc, Pout)
        run(ex); run(ad[1:]); run(cv)
        k(f"s_branch {pf}_back{nm}")
        tr_slow[par] = k.L[b0:]
    def epilogue():
        half_op(k, "v_add_f32", vL, vT)
        k(f"v_rcp_f32 v{vF}, v{vL}")
        k(f"s_lshl_b32 s{sT0}, s{sRB}, 18")
        k(f"s_lshl_b32 s{sT1}, s{sHEAD}, 13")
        k(f"s_add_u32 s{sT0}, s{sT0}, s{sT1}")
        k(f"s_add_u32 s{sT0}, s{sT0}, {WS_CTX}")
        k(f"s_add_u32 s{sT1}, s{sT0}, 4096")
        for f in range(8):
            d = O + 8 * f
            for i in range(8): k(f"v_mul_f32 v{d+i}, v{d+i}, v{vF}")
            for i in range(4): k(f"v_cvt_pk_bf16_f32 v{d+i}, v{d+2*i}, v{d+2*i+1}")
            k(f"buffer_store_dwordx4 {v(d,4)}, v{vL16}, s[16:19], s{sT0 if f < 4 else sT1} offen offset:{(f & 3) * 1024}")
    tr_fin = {}
    for par in range(2):
        nm = "AB"[par]
        Pin = P0 if par == 0 else P1
        k.label(f"{pf}_fin{nm}")
        b0 = len(k.L)
        fill = {}
        if isS and par == 0:
            for e, l in enumerate(kvdma_main()): fill[e] = list(l)
        emit_segment(k, pv_mf(par, Pin), [], RING, R, LA, fill)
        if isS:
            run(rotate())
            k("s_waitcnt vmcnt(8)")
            k("s_barrier")
        elif par == 1:
            k(f"s_cmp_eq_u32 s3, 3")
            k(f"s_cbranch_scc1 {pf}_epi")
            k("s_barrier")
        if par == 0: k(f"s_branch {pf}_epi")
        tr_fin[par] = k.L[b0:]
    k.label(f"{pf}_epi")
    b0 = len(k.L)
    st()
    if isS:
        for l in kvdma_main(): run(l)
    else:
        k("s_nop 7"); k("s_nop 3")
    epilogue()
    st()
    if isS:
        k("s_waitcnt vmcnt(16)")
        k.label("S_loader")
        k(f"s_add_u32 s{sT0}, s{sTAU}, 2")
        k(f"s_cmp_gt_u32 s{sT0}, s{sTMAX}")
        k(f"s_cbranch_scc1 S_exit")
        run(rotate())
        k("s_barrier")
        for l in kvdma_main(): run(l)
        k("s_waitcnt vmcnt(8)")
        k("s_branch S_loader")
        k.label("S_exit")
    if st.on: k("s_waitcnt vmcnt(0)")
    st()
    st.flush(16, 3, 12)
    k("s_endpgm")
    tr_epi = k.L[b0:]
    pre = traces["pre"]
    body = tA + tB + tE
    traces["list"] += [pre + t_pro + body + body + tA[:2] + tr_rare[0][:2] + tr_fin[0] + tr_epi,
                       pre + t_pro + tA + tB[:2] + tr_rare[1] + tB[2:] + tE + tA + tB[:2] + tr_rare[1][:2] + tr_fin[1] + tr_epi,
                       pre + t_pro + tA[:2] + tr_rare[0] + tA[2:-2] + tr_slow[0] + tA[-1:] + tB[:-2] + tr_slow[1] + tB[-1:] + tE + body,
                       pre + t_pro + tA[:2] + tr_rare[0][:2] + tr_fin[0] + tr_epi]

def gen_k2():
    k = K()
    k("s_cmp_ge_u32 s2, 256")
    k("s_cbranch_scc1 K2_end")
    stL = Stamps(k, 'k2', sbase=86, maxn=8)
    k(f"s_load_dwordx2 s[4:5], s[0:1], {KA['ws']}")
    k(f"s_load_dwordx2 s[6:7], s[0:1], {KA['wq']}")
    k("v_lshrrev_b32 v5, 6, v0")
    wtile_lane_base(k, vLB, 6)
    k("v_readfirstlane_b32 s3, v5")
    wtile_dma_voff(k, vDO, 6, 8192)
    k(f"v_and_b32 v{vL16}, 63, v0")
    k(f"v_lshlrev_b32 v{vL16}, 4, v{vL16}")
    k(f"s_and_b32 s{sHEAD}, s2, 7")
    k(f"s_lshl_b32 s{sHEAD}, s{sHEAD}, 2")
    k(f"s_lshr_b32 s{sT0}, s2, 3")
    k(f"s_and_b32 s{sT1}, s{sT0}, 3")
    k(f"s_add_u32 s{sHEAD}, s{sHEAD}, s{sT1}")
    k(f"s_lshr_b32 s{sPAIR}, s{sT0}, 2")
    k(f"s_lshl_b32 s{sT0}, s{sPAIR}, 2")
    k(f"s_sub_u32 s{sT1}, 60, s{sT0}")
    k(f"s_add_u32 s{sT1}, s{sT1}, s3")
    k(f"s_add_u32 s{sT0}, s{sT0}, 7")
    k(f"s_sub_u32 s{sT0}, s{sT0}, s3")
    k("s_cmp_lt_u32 s3, 4")
    k(f"s_cselect_b32 s{sRB}, s{sT1}, s{sT0}")
    k(f"s_add_u32 s{sREM}, s{sRB}, 1")
    k(f"s_lshl_b32 s{sT0}, s{sPAIR}, 1")
    k(f"s_sub_u32 s{sTMAX}, 32, s{sT0}")
    k(f"s_mov_b32 s{sTAU}, 0")
    k(f"s_lshl_b32 s{sWSRC}, s{sHEAD}, 8")
    k(f"s_lshl_b32 s{sT0}, s3, 17")
    k(f"s_add_u32 s{sWSRC}, s{sWSRC}, s{sT0}")
    k(f"s_mul_i32 s{sWLDS}, s3, 4352")
    k(f"s_mul_i32 s{sHB}, s{sRB}, 40960")
    k(f"s_add_u32 s{sHB}, s{sHB}, {WS_H}")
    k(f"s_and_b32 s{sSW}, s3, 3")
    k(f"s_lshl_b32 s{sSW}, s{sSW}, 12")
    k(f"s_lshl_b32 s{sT0}, s{sHEAD}, 19")
    k(f"s_add_u32 s{sT0}, s{sT0}, s{sSW}")
    k(f"s_add_u32 s{sKS}, s{sT0}, {3*16384}")
    k(f"s_add_u32 s{sVS}, s{sT0}, {(WS_V - WS_K) + 2*16384}")
    k(f"s_lshl_b32 s{sT1}, s{sTMAX}, 14")
    k(f"s_add_u32 s{sKLIM}, s{sT0}, s{sT1}")
    k(f"s_add_u32 s{sVLIM}, s{sKLIM}, {WS_V - WS_K}")
    k(f"s_mov_b32 s{sOOB}, 0x7fff0000")
    k(f"s_mov_b32 s{sTHR}, {fhex(THR)}")
    k(f"s_mov_b32 s{sPREV}, {(4 % 4) * WSLOT}")
    k(f"s_mov_b32 s{sCUR}, {(5 % 4) * WSLOT}")
    k(f"s_mov_b32 s{sNEXT}, {(6 % 4) * WSLOT}")
    k("s_waitcnt lgkmcnt(0)")
    srd(k, 16, 4, WS_SIZE)
    srd(k, 20, 6, 640*8192)
    srd(k, 24, 4, 2*(WS_V - WS_K), WS_K)
    traces = {"pre": list(k.L), "list": []}
    k("s_cmp_ge_u32 s3, 4")
    k("s_cbranch_scc1 S_path")
    class NoSt:
        on = False
        def __call__(self): pass
        def flush(self, *a): pass
    gen_path(k, False, NoSt(), traces)
    k.label("S_path")
    gen_path(k, True, NoSt(), traces)
    k.label("K2_end")
    k("s_endpgm")
    return k, 256, 512, 4 * WSLOT, 240, traces["list"]
```

```python
from common import *
import math
C1 = 2 * math.sqrt(2 / math.pi) * LOG2E
C2 = C1 * 0.044715

def gelu_ops(x, t, sC1, sC2):
    out = []
    out += [f"v_mul_f32 v{b}, v{a}, v{a}" for a, b in zip(x, t)]
    out += [f"v_fma_f32 v{b}, v{b}, s{sC2}, v{sC1}" for a, b in zip(x, t)]
    out += [f"v_mul_f32 v{b}, v{a}, v{b}" for a, b in zip(x, t)]
    out += [f"v_exp_f32 v{b}, v{b}" for a, b in zip(x, t)]
    out += [f"v_add_f32 v{b}, 1.0, v{b}" for a, b in zip(x, t)]
    out += [f"v_rcp_f32 v{b}, v{b}" for a, b in zip(x, t)]
    out += [f"v_mul_f32 v{a}, v{a}, v{b}" for a, b in zip(x, t)]
    return out

def unpack(k, dst, src, n):
    for i in range(n):
        k(f"v_lshlrev_b32 v{dst+2*i}, 16, v{src+i}")
        k(f"v_and_b32 v{dst+2*i+1}, 0xffff0000, v{src+i}")

def gemmA(name, kind, wkey, pitch, wrows, RB, NB, KS, NKS, SK, NSLOT, act_off, act_nks, nwg):
    k = K(); vm = VM(k); st = Stamps(k, name)
    P = NB * 64
    UNIT = NB * 1024
    STAGE = KS * SK * UNIT
    NST = NKS // SK
    assert NKS % SK == 0 and RB * KS == 4
    ACC = 16; RING = 96; ACT = 128; NACT = 32
    vLB, vWA, vL16, vA0, vA1 = 1, 2, 3, 4, 10
    vDO = 5
    vT, vT2, vC1 = 11, 12, 13
    L = name.upper()
    k(f"s_cmp_ge_u32 s2, {nwg}")
    k(f"s_cbranch_scc1 {L}_end")
    st()
    k(f"s_load_dwordx2 s[4:5], s[0:1], {KA['ws']}")
    k(f"s_load_dwordx2 s[6:7], s[0:1], {KA[wkey]}")
    if kind == "g5": k(f"s_load_dwordx2 s[8:9], s[0:1], {KA['out']}")
    k("v_lshrrev_b32 v5, 6, v0")
    k(f"v_and_b32 v{vT2}, 63, v0")
    k("v_readfirstlane_b32 s3, v5")
    k(f"v_lshlrev_b32 v{vL16}, 4, v{vT2}")
    if kind == "g1":
        k("s_and_b32 s32, s2, 7"); k("s_lshr_b32 s33, s2, 3")
        k("s_lshr_b32 s34, s32, 1")
        k("s_and_b32 s35, s32, 1"); k("s_lshl_b32 s35, s35, 3")
        k("s_lshr_b32 s36, s33, 2"); k("s_add_u32 s35, s35, s36")
        k("s_and_b32 s36, s33, 3")
        k("s_lshl_b32 s37, s35, 2"); k("s_add_u32 s37, s37, s3")
        k("s_mul_i32 s38, s36, 5")
        k("s_lshl_b32 s39, s34, 6")
        k("s_mov_b32 s40, 0")
    else:
        k("s_and_b32 s32, s2, 7"); k("s_lshr_b32 s33, s2, 3")
        k("s_and_b32 s35, s33, 3"); k("s_lshr_b32 s36, s33, 2")
        k("s_lshl_b32 s37, s32, 3"); k("s_lshl_b32 s34, s35, 1"); k("s_add_u32 s37, s37, s34")
        k("s_and_b32 s34, s3, 1"); k("s_add_u32 s37, s37, s34")
        k("s_mul_i32 s38, s36, 3"); k("s_min_u32 s38, s38, 17")
        k("s_mov_b32 s39, 0")
        k("s_lshr_b32 s40, s3, 1")
    k(f"v_bfe_u32 v{vLB}, v0, 2, 2")
    k(f"v_bfe_u32 v{vT}, v0, 5, 1")
    k(f"v_lshl_add_u32 v{vLB}, v{vT}, 2, v{vLB}")
    k(f"v_mul_u32_u24 v{vLB}, {P}, v{vLB}")
    k(f"v_bfe_u32 v{vT}, v0, 4, 1")
    k(f"v_lshl_add_u32 v{vLB}, v{vT}, 5, v{vLB}")
    k(f"v_and_b32 v{vT}, 3, v0")
    k(f"v_lshl_add_u32 v{vLB}, v{vT}, 3, v{vLB}")
    k(f"s_mul_i32 s41, s40, {SK*UNIT}")
    k(f"v_add_u32 v{vLB}, s41, v{vLB}")
    M = -(-65536 // (4 * NB))
    for q in range(64 * NB): assert (q * M) >> 16 == q // (4 * NB)
    for i in range(NB):
        k(f"v_add_u32 v{vT}, {64*i}, v{vT2}")
        k(f"v_mul_u32_u24 v{vDO+i}, {M}, v{vT}")
        k(f"v_lshrrev_b32 v{vDO+i}, 16, v{vDO+i}")
        k(f"v_mul_u32_u24 v{vC1}, {4*NB}, v{vDO+i}")
        k(f"v_sub_u32 v{vT}, v{vT}, v{vC1}")
        k(f"v_mul_u32_u24 v{vDO+i}, {pitch}, v{vDO+i}")
        k(f"v_lshl_add_u32 v{vDO+i}, v{vT}, 4, v{vDO+i}")
    UPW = KS * SK // 4
    assert KS * SK % 4 == 0 and SK % UPW == 0
    k(f"s_mul_i32 s42, s3, {UPW}")
    if KS == 1:
        k("s_mov_b32 s43, s42")
    else:
        k(f"s_lshr_b32 s43, s3, 1"); k(f"s_mul_i32 s43, s43, {NKS - SK}"); k("s_add_u32 s43, s43, s42")
    k("s_add_u32 s43, s43, s39")
    k(f"s_mul_i32 s43, s43, {16*pitch}")
    k("s_lshl_b32 s44, s38, 6")
    k("s_add_u32 s43, s43, s44")
    k(f"s_mul_i32 s42, s42, {UNIT}")
    k(f"s_mul_i32 s45, s40, {NKS}"); k("s_add_u32 s45, s45, s39"); k("s_lshl_b32 s45, s45, 10")
    if kind == "g3":
        k(f"v_and_b32 v{vT}, 31, v0")
        k("s_lshl_b32 s46, s37, 5")
        k(f"v_add_u32 v{vT}, s46, v{vT}")
        k("s_add_u32 s46, s40, 1")
        k(f"v_mov_b32 v{vC1}, 0x7fff0000")
        for reg, op in ((vA0, "v_subrev_u32"), (vA1, "v_add_u32")):
            k(f"{op} v{vT2}, s46, v{vT}")
            k(f"v_cmp_gt_u32 vcc, 2048, v{vT2}")
            k(f"v_lshrrev_b32 v{reg}, 5, v{vT2}")
            k(f"v_mul_u32_u24 v{reg}, {act_nks*1024}, v{reg}")
            k(f"v_and_b32 v{vT2}, 31, v{vT2}")
            k(f"v_lshl_add_u32 v{reg}, v{vT2}, 4, v{reg}")
            k(f"v_bfe_u32 v{vT2}, v0, 5, 1")
            k(f"v_lshl_add_u32 v{reg}, v{vT2}, 9, v{reg}")
            k(f"v_cndmask_b32 v{reg}, v{vC1}, v{reg}, vcc")
    else:
        k(f"s_mul_i32 s46, s37, {act_nks*1024}"); k("s_add_u32 s45, s45, s46")
    k("s_waitcnt lgkmcnt(0)")
    srd(k, 16, 4, WS_SIZE)
    srd(k, 20, 6, wrows * pitch)
    srd(k, 24, 4, 64 * act_nks * 1024, act_off)
    if kind == "g5": srd(k, 28, 8, 2048 * 1280)
    def dma(t):
        out = []
        for u in range(UPW):
            for i in range(NB):
                def f(u=u, i=i):
                    k(f"s_add_u32 m0, s42, {(t % NSLOT) * STAGE + u * UNIT + i * 1024}")
                    if i == 0: k(f"s_add_u32 s47, s43, {(t * SK + u) * 16 * pitch}")
                    else: k("s_nop 0")
                    vm.issue(f"buffer_load_dwordx4 v{vDO+i}, s[20:23], s47 offen lds", f"D{t}")
                out.append(f)
        return out
    def actf(t):
        out = []
        for sk in range(SK):
            ks = t * SK + sk
            def f(ks=ks, sk=sk):
                av = vL16 if kind != "g3" else (vA0 if ks < 10 else vA1)
                if sk == 0 or ks % 4 == 0: k(f"s_add_u32 s48, s45, {(ks // 4) * 4096}")
                vm.issue(f"buffer_load_dwordx4 {v(ACT + 4 * (ks % NACT), 4)}, v{av}, s[24:27], s48 offen offset:{(ks % 4) * 1024}", f"A{t}")
            out.append(f)
        return out
    def run(lst):
        for it in lst:
            if callable(it): it()
            else: k(it)
    AHEAD = NSLOT - 1
    assert (AHEAD + 1) * SK <= NACT
    run(dma(0)); run(actf(0)); run(dma(1)); run(actf(1))
    k(f"v_mov_b32 v{vWA}, v{vLB}")
    st()
    vm.wait("D1", "A0")
    k("s_barrier")
    st()
    R, LA = 8, 7
    def rdf(sk, cb):
        off = sk * UNIT + cb * 64
        return lambda r: [f"ds_read_b64_tr_b16 {v(r,2)}, v{vWA} offset:{off}", f"ds_read_b64_tr_b16 {v(r+2,2)}, v{vWA} offset:{off + 8*P}"]
    rd = [rdf(sk, cb) for sk in range(SK) for cb in range(NB)]
    NM = SK * NB
    issue_first(k, rd, RING, R, LA)
    for t in range(NST):
        mf = []
        for n in range(NM):
            sk, cb = n // NB, n % NB
            ks = t * SK + sk
            d = ACC + 16 * cb
            mf.append((lambda r, d=d, a=ACT + 4 * (ks % NACT), c=(None if ks == 0 else d): mfma32(d, r, a, c), rd[n]))
        loads = []
        if t == 0:
            for tt in range(2, AHEAD):
                if tt < NST: loads += dma(tt) + actf(tt)
        if t + AHEAD < NST: loads += dma(t + AHEAD) + actf(t + AHEAD)
        fill = {}
        for e, f in enumerate(loads): fill.setdefault(e * NM // max(len(loads), 1), []).append(f)
        last = t == NST - 1
        if not last:
            fill.setdefault(NM - LA - 1, []).insert(0, f"v_add_u32 v{vWA}, {((t + 1) % NSLOT) * STAGE}, v{vLB}")
        emit_segment(k, mf, [] if last else rd[:LA], RING, R, LA, fill, phase=(t * NM) % R, waitpair=(NM % 2 == 0))
        if not last:
            vm.wait(f"D{t+2}", f"A{t+1}")
            k("s_barrier")
    st()
    traces = []
    base_tr = list(k.L)
    if kind == "g1":
        k("s_nop 7"); k("s_nop 3")
        k(f"s_mul_i32 s46, s34, {64*40960}")
        k("s_mul_i32 s47, s37, 40960"); k("s_add_u32 s46, s46, s47")
        k("s_lshl_b32 s47, s38, 11"); k("s_add_u32 s46, s46, s47")
        k(f"s_add_u32 s46, s46, {WS_P1}")
        for u in range(10):
            d = ACC + 8 * u
            for i in range(4): k(f"v_cvt_pk_bf16_f32 v{d+i}, v{d+2*i}, v{d+2*i+1}")
            if u and u % 4 == 0: k("s_add_u32 s46, s46, 4096")
            k(f"buffer_store_dwordx4 {v(d,4)}, v{vL16}, s[16:19], s46 offen offset:{(u % 4) * 1024}")
        traces.append(list(k.L))
    else:
        k("s_mul_i32 s46, s37, 40960"); k("s_lshl_b32 s47, s38, 11"); k("s_add_u32 s46, s46, s47")
        k("s_mul_i32 s47, s40, 3072"); k("s_add_u32 s46, s46, s47")
        X = ACT
        if kind == "g3":
            k(f"s_add_u32 s47, s46, {WS_H2}")
            for u in range(3): vm.issue(f"buffer_load_dwordx4 {v(X+4*u,4)}, v{vL16}, s[16:19], s47 offen offset:{u*1024}", "E")
        if kind == "g5":
            k(f"s_add_u32 s47, s46, {WS_X1}")
            for u in range(3): vm.issue(f"buffer_load_dwordx4 {v(X+4*u,4)}, v{vL16}, s[16:19], s47 offen offset:{u*1024}", "E")
            k(f"s_add_u32 s47, s46, {WS_X2}")
            for u in range(3): vm.issue(f"buffer_load_dwordx4 {v(X+12+4*u,4)}, v{vL16}, s[16:19], s47 offen offset:{u*1024}", "E")
            k(f"v_bfe_u32 v{vT}, v0, 5, 1"); k(f"v_lshlrev_b32 v{vT}, 4, v{vT}")
            k("s_lshl_b32 s47, s38, 7"); k("s_mul_i32 s48, s40, 192"); k("s_add_u32 s47, s47, s48")
            k(f"s_add_u32 s47, s47, {WS_MOD + 5*2560}")
            for u in range(3):
                for h in range(2): vm.issue(f"buffer_load_dwordx4 {v(X+24+8*u+4*h,4)}, v{vT}, s[16:19], s47 offen offset:{u*64+h*32}", "E")
        k("s_barrier")
        k(f"s_mul_i32 s47, s3, 6144")
        k(f"v_add_u32 v{vT2}, s47, v{vL16}")
        k(f"s_xor_b32 s47, s3, 2"); k(f"s_mul_i32 s47, s47, 6144")
        k(f"v_add_u32 v{vWA}, s47, v{vL16}")
        k(f"v_mov_b32 v{vC1}, {fhex(-C1)}")
        k(f"s_mov_b32 s49, {fhex(-C2)}")
        k("s_nop 3")
        k("s_cmp_eq_u32 s40, 1")
        k(f"s_cbranch_scc1 {L}_e1")
        pre_tr = list(k.L)
        q0 = list(vm.q)
        for kp in range(2):
            if kp == 1: k.label(f"{L}_e1")
            b0 = len(k.L)
            vm.q = list(q0)
            mine = ACC + 24 * kp; send = ACC + 24 * (1 - kp)
            for i in range(6): k(f"ds_write_b128 v{vT2}, {v(send+4*i,4)} offset:{i*1024}")
            k("s_waitcnt lgkmcnt(0)")
            k("s_barrier")
            for i in range(6): k(f"ds_read_b128 {v(RING+4*i,4)}, v{vWA} offset:{i*1024}")
            for i in range(6):
                k(f"s_waitcnt lgkmcnt({5-i})")
                for j in range(4): k(f"v_add_f32 v{mine+4*i+j}, v{mine+4*i+j}, v{RING+4*i+j}")
            T = ACT + 64
            if kind == "g2":
                run(gelu_ops([mine+i for i in range(24)], [T+i for i in range(24)], vC1, 49))
                k(f"s_add_u32 s46, s46, {WS_H1}")
                for u in range(3):
                    d = mine + 8 * u
                    for i in range(4): k(f"v_cvt_pk_bf16_f32 v{d+i}, v{d+2*i}, v{d+2*i+1}")
                    k(f"buffer_store_dwordx4 {v(d,4)}, v{vL16}, s[16:19], s46 offen offset:{u*1024}")
            elif kind == "g3":
                vm.wait("E")
                unpack(k, T, X, 12)
                for i in range(24): k(f"v_add_f32 v{mine+i}, v{mine+i}, v{T+i}")
                k(f"s_add_u32 s46, s46, {WS_X1}")
                for u in range(3):
                    d = mine + 8 * u
                    for i in range(4): k(f"v_cvt_pk_bf16_f32 v{X+4*u+i}, v{d+2*i}, v{d+2*i+1}")
                    k(f"buffer_store_dwordx4 {v(X+4*u,4)}, v{vL16}, s[16:19], s46 offen offset:{u*1024}")
                unpack(k, T, X, 12)
                SA, QA, SB, QB = T + 24, T + 25, T + 26, T + 27
                ra = range(16, 24) if kp == 0 else range(0, 24)
                k(f"v_mov_b32 v{SA}, 0"); k(f"v_mov_b32 v{QA}, 0")
                for i in ra:
                    k(f"v_add_f32 v{SA}, v{SA}, v{T+i}"); k(f"v_fmac_f32 v{QA}, v{T+i}, v{T+i}")
                if kp == 0:
                    k(f"v_mov_b32 v{SB}, 0"); k(f"v_mov_b32 v{QB}, 0")
                    for i in range(16):
                        k(f"v_add_f32 v{SB}, v{SB}, v{T+i}"); k(f"v_fmac_f32 v{QB}, v{T+i}, v{T+i}")
                    k("s_cmp_eq_u32 s36, 6"); k("s_cselect_b32 s47, 0, 1.0")
                    k(f"v_fmac_f32 v{SA}, s47, v{SB}"); k(f"v_fmac_f32 v{QA}, s47, v{QB}")
                half_op(k, "v_add_f32", SA, SB); half_op(k, "v_add_f32", QA, SB)
                k(f"v_and_b32 v{vT}, 31, v0"); k(f"v_lshlrev_b32 v{vT}, 3, v{vT}")
                k(f"s_lshl_b32 s47, s36, 15"); k(f"s_lshl_b32 s48, s37, 8"); k("s_add_u32 s47, s47, s48")
                k(f"s_add_u32 s47, s47, {WS_STAT + kp * 16384}")
                k(f"buffer_store_dwordx2 {v(SA,2)}, v{vT}, s[16:19], s47 offen")
            elif kind == "g5":
                vm.wait("E")
                unpack(k, T, X, 12)
                for i in range(24): k(f"v_add_f32 v{mine+i}, v{mine+i}, v{T+i}")
                unpack(k, T, X + 12, 12)
                for i in range(24): k(f"v_fma_f32 v{mine+i}, v{mine+i}, v{X+24+i}, v{T+i}")
                k(f"v_and_b32 v{vT}, 31, v0"); k(f"v_mul_u32_u24 v{vT}, 1280, v{vT}")
                k(f"v_bfe_u32 v{vT2}, v0, 5, 1"); k(f"v_lshl_add_u32 v{vT}, v{vT2}, 4, v{vT}")
                k("s_mul_i32 s47, s37, 40960"); k("s_lshl_b32 s48, s38, 6"); k("s_add_u32 s47, s47, s48")
                for u in range(3):
                    d = mine + 8 * u
                    for i in range(4): k(f"v_cvt_pk_bf16_f32 v{d+i}, v{d+2*i}, v{d+2*i+1}")
                    k("s_nop 1")
                    k(f"v_permlane32_swap_b32 v{d}, v{d+2}")
                    k(f"v_permlane32_swap_b32 v{d+1}, v{d+3}")
                    k(f"buffer_store_dwordx4 {v(d,4)}, v{vT}, s[28:31], s47 offen offset:{kp*96 + u*32}")
            if kp == 0: k(f"s_branch {L}_fin")
            traces.append(pre_tr + k.L[b0:])
        k.label(f"{L}_fin")
    if st.on: k("s_waitcnt vmcnt(0)")
    st()
    st.flush(16, 3, 14)
    k.label(f"{L}_end")
    k("s_endpgm")
    return (name + "_kernel", k, nwg, 256, max(NSLOT * STAGE, 24576), 256, traces)

def gen_r():
    k = K(); vm = VM(k)
    k("s_cmp_ge_u32 s2, 256")
    k("s_cbranch_scc1 R_end")
    k(f"s_load_dwordx2 s[4:5], s[0:1], {KA['ws']}")
    k("s_and_b32 s32, s2, 7"); k("s_lshr_b32 s33, s2, 3")
    k("s_lshl_b32 s34, s32, 3"); k("s_lshr_b32 s35, s33, 2"); k("s_add_u32 s34, s34, s35")
    k("s_and_b32 s35, s33, 3"); k("s_lshl_b32 s35, s35, 7")
    k("s_mul_i32 s34, s34, 40960"); k("s_add_u32 s34, s34, s35")
    k("v_and_b32 v1, 7, v0"); k("v_lshrrev_b32 v2, 3, v0")
    k("v_lshlrev_b32 v3, 9, v2"); k("v_lshl_add_u32 v3, v1, 4, v3")
    k("v_lshrrev_b32 v4, 1, v2"); k("v_lshlrev_b32 v4, 6, v4"); k("v_and_b32 v5, 1, v2"); k("v_lshl_add_u32 v4, v5, 4, v4")
    k("v_lshrrev_b32 v5, 6, v0")
    k("v_lshlrev_b32 v6, 6, v1"); k("v_lshl_add_u32 v7, v5, 2, v6")
    k("s_waitcnt lgkmcnt(0)")
    srd(k, 16, 4, WS_SIZE)
    for i in range(4):
        k(f"s_add_u32 s36, s34, {WS_P1 + i*64*40960}")
        vm.issue(f"buffer_load_dwordx4 {v(16+4*i,4)}, v3, s[16:19], s36 offen", f"P{i}")
    k(f"s_add_u32 s36, s34, {WS_XF}")
    vm.issue(f"buffer_load_dwordx4 v[32:35], v3, s[16:19], s36 offen", "X")
    for j, m in enumerate((2, 4, 3)):
        k(f"s_mov_b32 s36, {WS_MOD + m*2560}")
        vm.issue(f"buffer_load_dwordx4 {v(36+8*j,4)}, v4, s[16:19], s36 offen", "M")
        vm.issue(f"buffer_load_dwordx4 {v(40+8*j,4)}, v4, s[16:19], s36 offen offset:32", "M")
    A = 64; T = 72
    vm.wait("P0"); unpack(k, A, 16, 4)
    for i in range(1, 4):
        vm.wait(f"P{i}"); unpack(k, T, 16 + 4*i, 4)
        for j in range(8): k(f"v_add_f32 v{A+j}, v{A+j}, v{T+j}")
    vm.wait("X"); unpack(k, T, 32, 4)
    vm.wait("M")
    for j in range(8): k(f"v_fma_f32 v{A+j}, v{A+j}, v{36+j}, v{T+j}")
    cnt = [0]
    def rowsum(r):
        off = cnt[0] * 512; cnt[0] += 1
        k("s_nop 1")
        k(f"v_add_f32_dpp v{r}, v{r}, v{r} row_ror:8 row_mask:0xf bank_mask:0xf")
        k(f"v_mov_b32 v9, v{r}"); k("s_nop 1"); k(f"v_permlane16_swap_b32 v{r}, v9"); k(f"v_add_f32 v{r}, v{r}, v9")
        k(f"v_mov_b32 v9, v{r}"); k("s_nop 1"); k(f"v_permlane32_swap_b32 v{r}, v9"); k(f"v_add_f32 v{r}, v{r}, v9")
        k(f"ds_write_b32 v7, v{r} offset:{off}")
        k("s_waitcnt lgkmcnt(0)"); k("s_barrier")
        k(f"ds_read_b128 v[80:83], v6 offset:{off}"); k(f"ds_read_b128 v[84:87], v6 offset:{off+16}"); k(f"ds_read_b64 v[88:89], v6 offset:{off+32}")
        k("s_waitcnt lgkmcnt(0)")
        k(f"v_add_f32 v{r}, v80, v81")
        for i in range(2, 10): k(f"v_add_f32 v{r}, v{r}, v{80+i}")
    def pack_store(dst, off, tag):
        for i in range(4): k(f"v_cvt_pk_bf16_f32 v{dst+i}, v{A+2*i}, v{A+2*i+1}")
        k(f"s_add_u32 s36, s34, {off}")
        k(f"buffer_store_dwordx4 {v(dst,4)}, v3, s[16:19], s36 offen")
    def lnorm():
        k(f"v_add_f32 v8, v{A}, v{A+1}")
        for j in range(2, 8): k(f"v_add_f32 v8, v8, v{A+j}")
        rowsum(8)
        k(f"v_mul_f32 v8, {fhex(1/640)}, v8")
        for j in range(8): k(f"v_sub_f32 v{A+j}, v{A+j}, v8")
        k(f"v_mul_f32 v8, v{A}, v{A}")
        for j in range(1, 8): k(f"v_fmac_f32 v8, v{A+j}, v{A+j}")
        rowsum(8)
        k(f"v_mov_b32 v9, {fhex(1e-5)}"); k(f"v_fmac_f32 v9, {fhex(1/640)}, v8"); k("v_rsq_f32 v8, v9"); k("s_nop 0")
        for j in range(8): k(f"v_mul_f32 v{A+j}, v{A+j}, v8")
    pack_store(16, WS_X2, "x2"); unpack(k, A, 16, 4)
    lnorm()
    for j in range(8): k(f"v_fma_f32 v{A+j}, v{A+j}, v{44+j}, v{52+j}")
    pack_store(20, WS_H2, "h2"); unpack(k, A, 20, 4)
    lnorm()
    pack_store(24, WS_T, "t")
    k.label("R_end")
    k("s_endpgm")
    return ("kr_kernel", k, 256, 640, 2048, 96, None)

def gen_g4():
    k = K(); vm = VM(k); st = Stamps(k, "g4")
    ACC = 16; RING = 48; ACT = 80; pitch = 3456
    vLB, vL16, vDO, vT, vT2, vC1 = 1, 2, 3, 4, 5, 6
    k("s_cmp_ge_u32 s2, 216")
    k("s_cbranch_scc1 G4_end")
    st()
    k(f"s_load_dwordx2 s[4:5], s[0:1], {KA['ws']}")
    k(f"s_load_dwordx2 s[6:7], s[0:1], {KA['w3']}")
    k("v_lshrrev_b32 v5, 6, v0")
    k(f"v_and_b32 v{vL16}, 63, v0")
    k("v_readfirstlane_b32 s3, v5")
    k(f"v_lshlrev_b32 v{vL16}, 4, v{vL16}")
    k("s_and_b32 s32, s2, 7"); k("s_lshr_b32 s33, s2, 3")
    k("s_lshl_b32 s37, s32, 3"); k("s_add_u32 s37, s37, s3")
    k(f"v_bfe_u32 v{vLB}, v0, 3, 1"); k(f"v_mul_u32_u24 v{vLB}, 1088, v{vLB}")
    k(f"v_bfe_u32 v{vT}, v0, 2, 1"); k(f"v_lshl_add_u32 v{vLB}, v{vT}, 7, v{vLB}")
    k(f"v_bfe_u32 v{vT}, v0, 5, 1"); k(f"v_lshl_add_u32 v{vLB}, v{vT}, 8, v{vLB}")
    k(f"v_bfe_u32 v{vT}, v0, 4, 1"); k(f"v_lshl_add_u32 v{vLB}, v{vT}, 5, v{vLB}")
    k(f"v_and_b32 v{vT}, 3, v0"); k(f"v_lshl_add_u32 v{vLB}, v{vT}, 3, v{vLB}")
    k(f"v_add_u32 v7, {20*2176}, v{vLB}")
    k(f"v_bfe_u32 v{vDO}, v0, 4, 2"); k(f"v_lshlrev_b32 v{vDO}, 2, v{vDO}")
    k(f"v_bfe_u32 v{vT}, v0, 3, 1"); k(f"v_add_u32 v{vDO}, v{vDO}, v{vT}")
    k(f"v_mul_u32_u24 v{vDO}, {pitch}, v{vDO}")
    k(f"v_and_b32 v{vT}, 7, v0"); k(f"v_lshl_add_u32 v{vDO}, v{vT}, 4, v{vDO}")
    k(f"s_mul_i32 s43, s3, {16*pitch}"); k("s_lshl_b32 s44, s33, 7"); k("s_add_u32 s43, s43, s44")
    k("s_mul_i32 s42, s3, 2176")
    k("s_mul_i32 s45, s37, 40960"); k(f"s_add_u32 s45, s45, {WS_X1}")
    k("s_waitcnt lgkmcnt(0)")
    srd(k, 16, 4, WS_SIZE)
    srd(k, 20, 6, 640 * pitch)
    def dma(c):
        out = []
        for n in range(2):
            def f(n=n):
                k(f"s_add_u32 m0, s42, {c*8*2176 + n*1088}")
                k(f"s_add_u32 s47, s43, {(c*128 + 2*n) * pitch}")
                vm.issue(f"buffer_load_dwordx4 v{vDO}, s[20:23], s47 offen lds", f"D{c}")
            out.append(f)
        return out
    def actf(c):
        out = []
        for i in range(8):
            def f(i=i):
                if i % 4 == 0: k(f"s_add_u32 s48, s45, {c*8192 + (i//4)*4096}")
                vm.issue(f"buffer_load_dwordx4 {v(ACT+32*c+4*i,4)}, v{vL16}, s[16:19], s48 offen offset:{(i%4)*1024}", f"A{c}")
            out.append(f)
        return out
    def run(lst):
        for it in lst:
            if callable(it): it()
            else: k(it)
    run(dma(0)); run(dma(1)); run(actf(0)); run(actf(1))
    st()
    vm.wait("D1", "A0")
    k("s_barrier")
    st()
    R, LA = 8, 7
    def rdf(ks, cb):
        va, off = (vLB, ks * 2176 + cb * 64) if ks < 20 else (7, (ks - 20) * 2176 + cb * 64)
        return lambda r: [f"ds_read_b64_tr_b16 {v(r,2)}, v{va} offset:{off}", f"ds_read_b64_tr_b16 {v(r+2,2)}, v{va} offset:{off + 512}"]
    rd = [rdf(ks, cb) for ks in range(40) for cb in range(2)]
    issue_first(k, rd, RING, R, LA)
    ST = ACT; CS = ACT + 32
    def epi_loads():
        out = []
        def a():
            k(f"v_and_b32 v{vT}, 31, v0"); k(f"v_lshlrev_b32 v{vT}, 3, v{vT}")
            k(f"v_bfe_u32 v{vT2}, v0, 5, 1"); k(f"v_lshl_add_u32 v{vT}, v{vT2}, 14, v{vT}")
            k(f"v_lshlrev_b32 v{vT2}, 4, v{vT2}")
            k(f"s_lshl_b32 s46, s37, 8"); k(f"s_add_u32 s46, s46, {WS_STAT}")
            k(f"s_lshl_b32 s49, s33, 8"); k(f"s_add_u32 s49, s49, {WS_CS3}")
        out.append(a)
        for p in range(7):
            def f(p=p):
                vm.issue(f"buffer_load_dwordx2 {v(ST+2*p,2)}, v{vT}, s[16:19], s46 offen", "E")
                k("s_add_u32 s46, s46, 32768")
            out.append(f)
        for u in range(8):
            out.append(lambda u=u: vm.issue(f"buffer_load_dwordx4 {v(CS+4*u,4)}, v{vT2}, s[16:19], s49 offen offset:{u*32}", "E"))
        return out
    for c in range(5):
        mf = []
        for n in range(16):
            ks, cb = c * 8 + n // 2, n % 2
            d = ACC + 16 * cb
            mf.append((lambda r, d=d, a=ACT + 4 * ks, cc=(None if ks == 0 else d): mfma32(d, r, a, cc), rd[c*16+n]))
        loads = []
        if c + 2 < 5: loads += dma(c + 2) + actf(c + 2)
        if c == 3: loads += epi_loads()
        fill = {}
        for e, f in enumerate(loads): fill.setdefault(e * 16 // max(len(loads), 1), []).append(f)
        emit_segment(k, mf, rd[c*16+16: c*16+16+LA], RING, R, LA, fill)
        if c < 4:
            vm.wait(f"D{c+2}", f"A{c+1}")
            if c < 3: k("s_barrier")
    st()
    vm.wait("E")
    S, Qq = ST, ST + 1
    for p in range(1, 7):
        k(f"v_add_f32 v{S}, v{S}, v{ST+2*p}"); k(f"v_add_f32 v{Qq}, v{Qq}, v{ST+2*p+1}")
    half_op(k, "v_add_f32", S, vT); half_op(k, "v_add_f32", Qq, vT)
    k(f"v_mul_f32 v{S}, {fhex(1/640)}, v{S}")
    k(f"v_mov_b32 v{vT}, {fhex(1e-5)}")
    k(f"v_fmac_f32 v{vT}, {fhex(1/640)}, v{Qq}")
    k(f"v_fma_f32 v{vT}, -v{S}, v{S}, v{vT}")
    k(f"v_max_f32 v{vT}, {fhex(1e-5)}, v{vT}")
    k(f"v_rsq_f32 v{Qq}, v{vT}")
    k(f"v_mov_b32 v{vC1}, {fhex(-C1)}")
    k(f"s_mov_b32 s49, {fhex(-C2)}")
    k("s_mul_i32 s46, s37, 110592"); k("s_lshl_b32 s47, s33, 12"); k("s_add_u32 s46, s46, s47"); k(f"s_add_u32 s46, s46, {WS_U}")
    T = ACT + 64
    for half in range(2):
        a = [ACC + 16*half + i for i in range(16)]
        for i in range(16): k(f"v_fma_f32 v{a[i]}, -v{S}, v{CS+16*half+i}, v{a[i]}")
        for i in range(16): k(f"v_mul_f32 v{a[i]}, v{a[i]}, v{Qq}")
        run(gelu_ops(a, [T+i for i in range(16)], vC1, 49))
        for u in range(2):
            d = ACC + 16*half + 8*u
            for i in range(4): k(f"v_cvt_pk_bf16_f32 v{d+i}, v{d+2*i}, v{d+2*i+1}")
            k(f"buffer_store_dwordx4 {v(d,4)}, v{vL16}, s[16:19], s46 offen offset:{(2*half+u)*1024}")
    if st.on: k("s_waitcnt vmcnt(0)")
    st()
    st.flush(16, 3, 14)
    k.label("G4_end")
    k("s_endpgm")
    return ("kg4_kernel", k, 216, 512, 80 * 1088, 240, None)

def gen_tail():
    return [gemmA("kg1", "g1", "wo", 1280, 4096, 4, 5, 1, 64, 4, 7, WS_CTX, 256, 256),
            gen_r(),
            gemmA("kg2", "g2", "w1", 1280, 640, 2, 3, 2, 20, 4, 5, WS_T, 40, 224),
            gemmA("kg3", "g3", "w2", 1280, 640, 2, 3, 2, 20, 4, 5, WS_H1, 40, 224),
            gen_g4(),
            gemmA("kg5", "g5", "w4", 1280, 1728, 2, 3, 2, 54, 6, 4, WS_U, 108, 224)]
```

```python
WS_MOD  = 0x0000000
WS_CS3  = 0x0004000
WS_STAT = 0x0010000
WS_CKV  = 0x0100000
WS_H    = 0x0400000
WS_XF   = 0x0700000
WS_K    = 0x1000000
WS_V    = 0x2000000
WS_CTX  = 0x3000000
WS_P1   = 0x4000000
WS_X2   = 0x5000000
WS_H2   = 0x5300000
WS_H1   = 0x5600000
WS_X1   = 0x5900000
WS_U    = 0x6000000
WS_SIZE = 0x10000000
WS_T    = 0x5C00000
```

```python
import sys
sys.path.insert(0, "gen")
from common import *
import k0
NAME = "adaLN_cond__compressed_kv_cla__mixer_s_mlp__prompt"
ref = open(f"cdna_kernels/{NAME}.s.ref").read()
hdr = [l for l in ref.split("\n") if l.startswith(";") and "@launch" not in l and "Override" not in l and "grid=ceil" not in l]

kernels = []
def add(name, kobj, grid, block, lds, nv, traces=None):
    kernels.append((name, kobj, grid, block, lds, nv, traces))

add("k0_kernel", k0.gen_k0(), k0.NWG0, 512, 18432, 80)
stages = sys.argv[2] if len(sys.argv) > 2 else "9"
try:
    import k1
    add("k1_kernel", *k1.gen_k1())
    import k2
    add("k2_kernel", *k2.gen_k2())
    import ktail
    for t in ktail.gen_tail(): add(*t)
except ImportError as e:
    print("skip:", e)

out = "\n".join(hdr) + "\n"
for (name, kobj, grid, block, lds, nv, tr) in kernels:
    out += f"; @launch kernel={name} grid=({grid},1,1) block=({block},1,1) lds={lds}\n"
out += '.amdgcn_target "amdgcn-amd-amdhsa--gfx950"\n.text\n'
nerr = 0
for (name, kobj, grid, block, lds, nv, tr) in kernels:
    out += kernel_wrap(name, kobj.text(), nv)
    if tr is None: tr = [kobj.L]
    for i, t in enumerate(tr): nerr += len(check_trace(t, f"{name}/{i}"))
out += '.section .rodata,"a"\n'
for (name, kobj, grid, block, lds, nv, tr) in kernels:
    out += ".p2align 6\n" + kernel_desc(name, nv)
path = sys.argv[1] if len(sys.argv) > 1 else f"cdna_kernels/{NAME}.s"
open(path, "w").write(out)
print("written", path, len(out), "bytes; hazard errors:", nerr)
```
